```python
import torch

def _softmax(x, axis=-1):
    return torch.softmax(x, dim=axis)
def _gelu(x):
    return torch.nn.functional.gelu(x, approximate="tanh")
def _silu(x):
    return torch.nn.functional.silu(x)
def _sigmoid(x):
    return torch.sigmoid(x)
def _layernorm(x, axis=-1, eps=1e-5):
    m = x.mean(dim=axis, keepdim=True)
    v = x.var(dim=axis, keepdim=True, unbiased=False)
    return (x - m) / torch.sqrt(v + eps)
def _scatter_add(tgt, idx, src, axis=0):
    return tgt.clone().index_add_(axis, idx, src)
def _segment_sum(src, seg, n):
    out = torch.zeros((n,) + src.shape[1:], dtype=src.dtype)
    return out.index_add_(0, seg, src)
def _pad(x, pw):
    flat = tuple(v for pair in reversed(pw) for v in pair)
    return torch.nn.functional.pad(x, flat)

kernel_name = 'parallel_sum__ssm_conv_s4d__swiglu_ffn__prompt'

def setup_inputs():

    _w = (lambda a: (lambda t: t.to(torch.bfloat16) if t.is_floating_point() else t)(torch.as_tensor(a)))
    def _A_setup():
        Bsz, L, D, N = 1, 2048, 576, 128
        return {
            "u": _w((lambda *s: torch.randn(*s, dtype=torch.bfloat16) * 0.05)(Bsz, L, D)),
            "log_A_real": _w((lambda *s: torch.randn(*s, dtype=torch.bfloat16) * 3.2)(D, N) * 0.5),
            "A_imag": _w((lambda *s: torch.randn(*s, dtype=torch.bfloat16) * 0.2)(D, N) * 3.14),
            "C_real": _w((lambda *s: torch.randn(*s, dtype=torch.bfloat16) * 3.2)(D, N) / N ** 0.5),
            "C_imag": _w((lambda *s: torch.randn(*s, dtype=torch.bfloat16) * 3.2)(D, N) / N ** 0.5),
            "log_dt": _w((lambda *s: torch.randn(*s, dtype=torch.bfloat16) * 0.2)(D) * 0.5 - 4.0),
            "D_skip": _w((lambda *s: torch.randn(*s, dtype=torch.bfloat16) * 0.2)(D)),
        }
    _A_in = _A_setup()

    def _B_setup():
        B, S, D, F = 1, 2048, 576, 4608
        return {
            "x": _w((lambda *s: torch.randn(*s, dtype=torch.bfloat16) * 0.05)(B, S, D)),
            "w_gate": _w((lambda *s: torch.randn(*s, dtype=torch.bfloat16) * 0.05)(D, F)),
            "w_up": _w((lambda *s: torch.randn(*s, dtype=torch.bfloat16) * 0.05)(D, F)),
            "w_down": _w((lambda *s: torch.randn(*s, dtype=torch.bfloat16) * 0.05)(F, D)),
        }
    _B_in = _B_setup()

    return {
        "A_u": _A_in["u"],
        "A_log_A_real": _A_in["log_A_real"],
        "A_A_imag": _A_in["A_imag"],
        "A_C_real": _A_in["C_real"],
        "A_C_imag": _A_in["C_imag"],
        "A_log_dt": _A_in["log_dt"],
        "A_D_skip": _A_in["D_skip"],
        "B_x": _B_in["x"],
        "B_w_gate": _B_in["w_gate"],
        "B_w_up": _B_in["w_up"],
        "B_w_down": _B_in["w_down"],
    }

def reference(A_u, A_log_A_real, A_A_imag, A_C_real, A_C_imag, A_log_dt, A_D_skip, B_x, B_w_gate, B_w_up, B_w_down):
    def _A_ref(u, log_A_real, A_imag, C_real, C_imag, log_dt, D_skip):
        L = u.shape[1]
        dt = torch.exp(log_dt)
        A = -torch.exp(log_A_real) + 1j * A_imag
        C = (C_real + 1j * C_imag) * dt[:, None]
        pos = (lambda x, dt: x.to(dt))(torch.arange(L), log_dt.dtype)
        P = torch.exp((A * dt[:, None])[:, :, None] * pos[None, None, :])
        K = 2.0 * torch.einsum("dn,dnl->dl", C, P).real
        L2 = 2 * L
        u_t = (lambda x, *d: x.permute(*d))(u, 0, 2, 1)
        Kf = (lambda x, *a, **k: torch.fft.rfft(x.float(), *a, **k))(K, L2)
        Uf = (lambda x, *a, **k: torch.fft.rfft(x.float(), *a, **k))(u_t, L2)
        y = (lambda x, *a, **k: torch.fft.irfft(x, *a, **k).to(torch.bfloat16))(Uf * Kf[None, :, :], L2)[:, :, :L]
        y = (lambda x, *d: x.permute(*d))(y, 0, 2, 1)
        return y + u * D_skip[None, None, :]

    def _B_ref(x, w_gate, w_up, w_down):
        g = _silu(x @ w_gate)
        u = x @ w_up
        return (g * u) @ w_down

    x = A_u
    xn = _layernorm(x, axis=-1)
    return x + _A_ref(xn, A_log_A_real, A_A_imag, A_C_real, A_C_imag, A_log_dt, A_D_skip) + _B_ref(xn, B_w_gate, B_w_up, B_w_down)
```

```python
import re

REG_RE = re.compile(r'^(-|\|)?(v|a|s)(\d+)\|?$')
RNG_RE = re.compile(r'^(-)?(v|a|s)\[(\d+):(\d+)\]$')

def parse_regs(op):
    op = op.strip()
    m = REG_RE.match(op)
    if m: return [(m.group(2), int(m.group(3)))]
    m = RNG_RE.match(op)
    if m: return [(m.group(2), i) for i in range(int(m.group(3)), int(m.group(4)) + 1)]
    if op == 'vcc': return [('s', 'vcc')]
    if op == 'exec': return [('s', 'exec')]
    if op == 'm0': return [('s', 'm0')]
    return []

def split_ops(rest):
    parts = []; depth = 0; cur = ''
    for ch in rest:
        if ch == '[': depth += 1
        if ch == ']': depth -= 1
        if ch == ',' and depth == 0:
            parts.append(cur.strip()); cur = ''
        else:
            cur += ch
    if cur.strip(): parts.append(cur.strip())
    ops = []; mods = []
    for i, p in enumerate(parts):
        if i == len(parts) - 1:
            w = p.split()
            ops.append(w[0]); mods = w[1:]
        else:
            w = p.split()
            ops.append(w[0])
            if len(w) > 1: mods += w[1:]
    return ops, mods

TRANS = ('v_exp_f32', 'v_log_f32', 'v_rcp_f32', 'v_rsq_f32', 'v_sqrt_f32', 'v_sin_f32', 'v_cos_f32')

class Ins:
    __slots__ = ('text', 'mn', 'kind', 'defs', 'uses', 'meta', 'ops', 'mods', 'sdefs_valu', 'passes', 'A', 'B', 'C', 'storedata')
    def __init__(self, text, meta=None):
        self.text = text; self.meta = meta or {}
        t = text.split(';')[0].strip()
        self.defs = []; self.uses = []; self.sdefs_valu = []; self.passes = 0
        self.A = self.B = self.C = []; self.storedata = []
        if not t or t.endswith(':') or t.startswith('.'):
            self.mn = ''; self.kind = 'none'; self.ops = []; self.mods = []; return
        sp = t.split(None, 1)
        mn = sp[0]; self.mn = mn
        rest = sp[1] if len(sp) > 1 else ''
        ops, mods = split_ops(rest) if rest else ([], [])
        self.ops = ops; self.mods = mods
        R = [parse_regs(o) for o in ops]
        flat = lambda l: [x for y in l for x in y]
        if mn.startswith('v_mfma'):
            self.kind = 'mfma'; self.defs = R[0]; self.A = R[1]; self.B = R[2]; self.C = R[3]
            self.uses = R[1] + R[2] + R[3]
            self.passes = 8 if '32x32' in mn else 4
        elif mn.startswith('v_cmp'):
            self.kind = 'valu'; self.defs = R[0]; self.uses = flat(R[1:]); self.sdefs_valu = R[0]
            if mn.startswith('v_cmpx'): self.defs = self.defs + [('s', 'exec')]
        elif mn in ('v_readfirstlane_b32', 'v_readlane_b32'):
            self.kind = 'valu'; self.defs = R[0]; self.uses = flat(R[1:]); self.sdefs_valu = R[0]
        elif mn.startswith('v_'):
            self.kind = 'valu'
            base = mn.replace('_e32', '').replace('_e64', '')
            if base in ('v_add_co_u32', 'v_sub_co_u32'):
                self.defs = R[0] + R[1]; self.uses = flat(R[2:]); self.sdefs_valu = R[1]
            elif base in ('v_addc_co_u32', 'v_subb_co_u32'):
                self.defs = R[0] + R[1]; self.uses = flat(R[2:]); self.sdefs_valu = R[1]
            elif base.startswith('v_permlane') and 'swap' in base:
                self.defs = R[0] + R[1]; self.uses = R[0] + R[1]
            else:
                self.defs = R[0]; self.uses = flat(R[1:])
                if base in ('v_fmac_f32', 'v_writelane_b32') or base.startswith('v_dot2c'): self.uses = self.uses + R[0]
                if 'dpp' in ' '.join(mods) or any(m.startswith(('quad_perm', 'row_', 'wave_')) for m in mods): self.meta['dpp'] = True
                if base == 'v_cndmask_b32' and len(ops) == 3: self.uses = self.uses + [('s', 'vcc')]
        elif mn.startswith('ds_read') or mn.startswith('ds_bpermute') or mn.startswith('ds_swizzle'):
            self.kind = 'ds'; self.defs = R[0]; self.uses = flat(R[1:])
        elif mn.startswith('ds_write'):
            self.kind = 'ds'; self.uses = flat(R)
        elif mn.startswith('buffer_load'):
            self.kind = 'vmem'
            if 'lds' in mods:
                self.uses = flat(R) + [('s', 'm0')]; self.meta['dma'] = True
            else:
                self.defs = R[0]; self.uses = flat(R[1:])
        elif mn.startswith('buffer_store'):
            self.kind = 'vmem'; self.uses = flat(R); self.storedata = R[0] if 'x4' in mn or 'x3' in mn else []
        elif mn.startswith('global_load_lds'):
            self.kind = 'vmem'; self.uses = flat(R) + [('s', 'm0')]; self.meta['dma'] = True
        elif mn.startswith('global_load'):
            self.kind = 'vmem'; self.defs = R[0]; self.uses = flat(R[1:])
        elif mn.startswith('global_store'):
            self.kind = 'vmem'; self.uses = flat(R); self.storedata = R[1] if 'x4' in mn or 'x3' in mn else []
        elif mn.startswith(('global_atomic', 'buffer_atomic')):
            self.kind = 'vmem'; self.uses = flat(R)
            if 'sc0' in mods: self.defs = R[0]
        elif mn.startswith('s_load') or mn in ('s_memtime', 's_memrealtime'):
            self.kind = 'smem'; self.defs = R[0]; self.uses = flat(R[1:])
        elif mn == 's_waitcnt':
            self.kind = 'wait'
        elif mn == 's_nop':
            self.kind = 'nop'
        elif mn == 's_barrier':
            self.kind = 'barrier'
        elif mn.startswith('s_cmp') or mn.startswith('s_cbranch') or mn in ('s_branch', 's_endpgm', 's_setprio', 's_sleep', 's_setpc_b64'):
            self.kind = 'salu'; self.uses = flat(R)
        elif mn.startswith('s_'):
            self.kind = 'salu'; self.defs = R[0] if R else []; self.uses = flat(R[1:])
            if 'saveexec' in mn: self.defs = self.defs + [('s', 'exec')]
            if mn in ('s_addk_i32', 's_mulk_i32'): self.uses = self.uses + R[0]
        else:
            raise ValueError('unknown instruction: ' + text)

    def states(self):
        if self.kind == 'none': return 0
        if self.kind == 'nop': return int(self.ops[0], 0) + 1
        return 1

def waitvals(ins):
    t = ins.text.split(';')[0]
    vm = re.search(r'vmcnt\((\d+)\)', t); lg = re.search(r'lgkmcnt\((\d+)\)', t)
    return (int(vm.group(1)) if vm else None, int(lg.group(1)) if lg else None)

def check_hazards(trace, name=''):
    errs = []
    n = len(trace)
    W = 24
    for i, c in enumerate(trace):
        if c.kind in ('none', 'nop', 'wait', 'barrier'): continue
        dist = 0
        j = i - 1
        cu = set(c.uses); cd = set(c.defs)
        while j >= 0 and dist < W:
            p = trace[j]
            if p.kind == 'none': j -= 1; continue
            need = 0; why = ''
            pd = set(p.defs)
            if p.kind == 'valu':
                if c.kind == 'mfma' and pd & cu: need, why = 2, 'VALU->MFMA src'
                if c.kind == 'valu' and c.meta.get('dpp') and pd & cu & {r for r in pd if r[0] == 'v'}: need, why = 2, 'VALU->DPP'
                if c.mn.startswith(('v_readfirstlane', 'v_readlane')) and pd & cu: need, why = max(need, 1), 'VALU->readlane'
                if c.mn.startswith('v_permlane') and pd & cu: need, why = 2, 'VALU->permlane'
                sd = set(p.sdefs_valu)
                if sd:
                    if c.kind == 'vmem' and sd & cu: need, why = 5, 'VALU sgpr->VMEM'
                    if c.kind == 'valu' and sd & cu: need, why = max(need, 2), 'VALU sgpr->VALU const'
                    if c.kind == 'salu' and sd & cu: need, why = max(need, 1), 'VALU sgpr->SALU (pad)'
                if p.mn.replace('_e32', '').replace('_e64', '') in TRANS and c.kind in ('valu', 'mfma') and pd & cu:
                    if not (c.mn.replace('_e32', '').replace('_e64', '') in TRANS): need, why = max(need, 1), 'trans->VALU'
                if ('s', 'exec') in pd and c.kind == 'mfma': need, why = 4, 'VALU exec->MFMA'
            if p.kind == 'salu' and ('s', 'm0') in pd and c.meta.get('dma'): need, why = 1, 'M0->DMA'
            if p.kind == 'mfma':
                lat = {4: 8, 8: 12}[p.passes]
                if c.kind == 'mfma':
                    if pd & set(c.A + c.B): need, why = lat, 'MFMA D->MFMA A/B'
                    elif pd & set(c.C):
                        if set(c.C) == pd and c.passes == p.passes: need = 0
                        else: need, why = {4: 6, 8: 10}[p.passes], 'MFMA D->MFMA C overlap'
                    elif pd & cd:
                        need, why = {4: 6, 8: 10}[p.passes], 'MFMA D->MFMA D WAW (conservative)'
                elif c.kind in ('valu', 'vmem', 'ds'):
                    if pd & cu or pd & cd: need, why = lat, 'MFMA D->VALU/mem'
                if c.kind == 'valu' and set(p.C) & cd: need, why = max(need, {4: 3, 8: 7}[p.passes]), (why or 'MFMA C WAR')
            if p.storedata and c.kind == 'valu' and set(p.storedata) & cd: need, why = max(need, 2), 'store data WAR'
            if p.storedata and c.kind in ('ds', 'vmem') and set(p.storedata) & cd: need, why = max(need, 1), 'store data WAR'
            if need > dist:
                errs.append(f'{name}[{i}] {why}: need {need} have {dist}\n    P: {p.text}\n    C: {c.text}')
            dist += p.states()
            j -= 1
    return errs

def check_counters(trace, name=''):
    errs = []
    vm = []
    lg = []
    pend = {}
    sm = []
    slot_fill = {}
    slot_reads = {}
    slot_lastread_bar = {}
    for i, c in enumerate(trace):
        if c.kind == 'none': continue
        if c.kind == 'wait':
            v, l = waitvals(c)
            if v is not None:
                while len(vm) > v:
                    k = vm.pop(0)
                    for r in trace[k].defs:
                        if pend.get(r) == k: del pend[r]
                    s = trace[k].meta.get('dma_slot')
                    if s is not None:
                        for ss in (s if isinstance(s, list) else [s]):
                            if slot_fill.get(ss, {}).get('idx') == k: slot_fill[ss]['done'] = True
            if l is not None:
                if l == 0:
                    for k in sm:
                        for r in trace[k].defs:
                            if pend.get(r) == k: del pend[r]
                    sm.clear()
                if True:
                    while len(lg) > l:
                        k = lg.pop(0)
                        for r in trace[k].defs:
                            if pend.get(r) == k: del pend[r]
                        s = trace[k].meta.get('wr_slot')
                        if s is not None:
                            for ss in (s if isinstance(s, list) else [s]):
                                if slot_fill.get(ss, {}).get('idx') == k: slot_fill[ss]['done'] = True
            continue
        if c.kind == 'barrier':
            for s, st in slot_fill.items():
                if st['done']: st['bar'] = True
            for s in list(slot_reads.keys()):
                outstanding = [k for k in slot_reads[s] if k in lg]
                slot_reads[s] = outstanding
                if not outstanding: slot_lastread_bar[s] = True
            continue
        for r in c.uses + c.defs:
            if r in pend and not (r in c.defs and r not in c.uses and c.kind in ('vmem', 'ds') and trace[pend[r]].kind == c.kind and False):
                errs.append(f'{name}[{i}] reg {r} has pending load\n    P: {trace[pend[r]].text}\n    C: {c.text}')
                del pend[r]
        rs = c.meta.get('rd_slot')
        if rs is not None:
            for s in (rs if isinstance(rs, list) else [rs]):
                st = slot_fill.get(s)
                shared = c.meta.get('shared', True)
                if st is None: errs.append(f'{name}[{i}] read of never filled slot {s}: {c.text}')
                elif not st['done'] or (shared and not st['bar']): errs.append(f'{name}[{i}] read of slot {s} not yet complete/visible: {c.text}')
                slot_reads.setdefault(s, []).append(i); slot_lastread_bar[s] = False
        for key in ('dma_slot', 'wr_slot'):
            ds = c.meta.get(key)
            if ds is not None:
                for s in (ds if isinstance(ds, list) else [ds]):
                    phys = c.meta.get('phys', {}).get(s) if isinstance(c.meta.get('phys'), dict) else None
                    slot_fill[s] = dict(idx=i, done=False, bar=False)
                fr = c.meta.get('frees')
                if fr is not None:
                    shared = c.meta.get('shared', True)
                    for s in (fr if isinstance(fr, list) else [fr]):
                        if s in slot_reads:
                            outstanding = [k for k in slot_reads[s] if k in lg]
                            if outstanding: errs.append(f'{name}[{i}] overwrite of slot {s} with reads outstanding: {c.text}')
                            elif shared and not slot_lastread_bar.get(s, True): errs.append(f'{name}[{i}] overwrite of slot {s} without barrier after last read: {c.text}')
        if c.kind == 'vmem':
            vm.append(i)
            if len(vm) > 63: errs.append(f'{name}[{i}] more than 63 vmem ops outstanding')
            for r in c.defs: pend[r] = i
        elif c.kind == 'ds':
            lg.append(i)
            for r in c.defs: pend[r] = i
        elif c.kind == 'smem':
            sm.append(i)
            for r in c.defs: pend[r] = i
    return errs

class Em:
    def __init__(self):
        self.lines = []; self.trace = []; self.text_on = True; self.trace_on = True
    def __call__(self, text, **meta):
        for t in text.split('\n'):
            t = t.strip()
            if not t: continue
            if self.text_on: self.lines.append(t)
            if self.trace_on: self.trace.append(Ins(t, dict(meta)))
    def label(self, l):
        if self.text_on: self.lines.append(l + ':')
    def raw(self, t):
        if self.text_on: self.lines.append(t)
    def nop(self, n):
        while n > 0:
            k = min(n, 16); self(f's_nop {k-1}'); n -= k
    def outstanding(self, kind):
        out = []
        for i, c in enumerate(self.trace):
            if c.kind == 'wait':
                v, l = waitvals(c)
                n = v if kind == 'vm' else l
                if n is not None:
                    while len(out) > n: out.pop(0)
            elif kind == 'vm' and c.kind == 'vmem': out.append(i)
            elif kind == 'lg' and c.kind == 'ds': out.append(i)
        return out
    def mark(self):
        return len(self.trace) - 1
    def wait_for(self, idx, kind):
        out = self.outstanding(kind)
        if idx not in out: return
        n = len(out) - 1 - out.index(idx)
        if kind == 'vm':
            self(f's_waitcnt vmcnt({min(n,63)})')
        else:
            self(f's_waitcnt lgkmcnt({min(n,15)})')
    def text(self):
        return '\n'.join(self.lines) + '\n'
```

```python
from asmlib import *

XF_OFF = 0x0
XT_OFF = 0x240000
KG_OFF = 0x480000
KG_ROW = 4224
YT_OFF = 0x700000
PART_OFF = 0xA00000
H_OFF = 0x1400000
WS_END = 0x2600000

ARG = dict(x=0, lar=8, aim=16, cre=24, cim=32, ldt=40, dsk=48, bx=56, wg=64, wu=72, wd=80, out=88, dbg=96, ws=104)

def kernel_header(name):
    return f'.globl {name}\n.p2align 8\n.type {name},@function\n{name}:'

def kernel_desc(name, vgpr, accum, sgpr=96):
    return f'''.amdhsa_kernel {name}
  .amdhsa_next_free_vgpr {vgpr}
  .amdhsa_next_free_sgpr {sgpr}
  .amdhsa_accum_offset {accum}
  .amdhsa_group_segment_fixed_size 0
  .amdhsa_kernarg_size 112
  .amdhsa_user_sgpr_count 2
  .amdhsa_user_sgpr_kernarg_segment_ptr 1
  .amdhsa_system_sgpr_workgroup_id_x 1
  .amdhsa_float_denorm_mode_32 3
.end_amdhsa_kernel'''

def add64(e, dst, src, off):
    e(f's_add_u32 s{dst}, s{src}, {off}')
    e(f's_addc_u32 s{dst+1}, s{src+1}, 0')

def srd(e, d, base, nbytes):
    e(f's_mov_b32 s{d}, s{base}')
    e(f's_mov_b32 s{d+1}, s{base+1}')
    e(f's_mov_b32 s{d+2}, {nbytes}')
    e(f's_mov_b32 s{d+3}, 0x00020000')
```

```python
from common import *

LOG2E = '0x3fb8aa3b'
LOG2E_LO = '0x32a57060'
LN2 = '0x3f317218'
K0_ROW = 544
K0_LDS = 96 * K0_ROW

def bf16r(e, dst, src):
    e(f'v_cvt_pk_bf16_f32 v{dst}, v{src}, v{src}')
    e(f'v_lshlrev_b32 v{dst}, 16, v{dst}')

def exp_acc(e, dst, x, t0, t1, sL, sLlo, sLn2):
    e(f'v_mul_f32 v{t0}, s{sL}, v{x}')
    e(f'v_fma_f32 v{t1}, s{sL}, v{x}, -v{t0}')
    e(f'v_fmac_f32 v{t1}, s{sLlo}, v{x}')
    e(f'v_exp_f32 v{dst}, v{t0}')
    e(f'v_mul_f32 v{t1}, s{sLn2}, v{t1}')
    e(f'v_fmac_f32 v{dst}, v{dst}, v{t1}')

def zpow(e, re, im, a2, b2, p, t0, t1):
    e(f'v_mul_f32 v{t0}, v{a2}, v{p}')
    e(f'v_mul_f32 v{t1}, v{b2}, v{p}')
    e(f'v_exp_f32 v{t0}, v{t0}')
    e(f'v_fract_f32 v{t1}, v{t1}')
    e(f'v_cos_f32 v{re}, v{t1}')
    e(f'v_sin_f32 v{im}, v{t1}')
    e('s_nop 0')
    e(f'v_mul_f32 v{re}, v{re}, v{t0}')
    e(f'v_mul_f32 v{im}, v{im}, v{t0}')

def gen_k0(e):
    name = 'ln_kgen_kernel'
    e.raw(kernel_header(name))
    e('s_cmp_ge_u32 s2, 640')
    e('s_cbranch_scc1 K0_END')
    e(f's_load_dwordx2 s[16:17], s[0:1], {ARG["ws"]}')
    e('s_cmp_lt_u32 s2, 64')
    e('s_cbranch_scc1 K0_LN')
    e(f's_load_dwordx8 s[4:11], s[0:1], {ARG["lar"]}')
    e(f's_load_dwordx4 s[12:15], s[0:1], {ARG["ldt"]}')
    e('s_sub_u32 s18, s2, 64')
    e('v_and_b32 v1, 127, v0')
    e('s_lshl_b32 s19, s18, 8')
    e('v_lshlrev_b32 v2, 1, v1')
    e('v_add_u32 v2, s19, v2')
    e('s_lshl_b32 s20, s18, 1')
    e('v_mov_b32 v3, s20')
    e('s_waitcnt lgkmcnt(0)')
    e('global_load_ushort v4, v2, s[4:5]')
    e('global_load_ushort v5, v2, s[6:7]')
    e('global_load_ushort v6, v2, s[8:9]')
    e('global_load_ushort v7, v2, s[10:11]')
    e('global_load_ushort v8, v3, s[12:13]')
    e('global_load_ushort v9, v3, s[14:15]')
    e(f's_mov_b32 s24, {LOG2E}')
    e(f's_mov_b32 s25, {LOG2E_LO}')
    e(f's_mov_b32 s26, {LN2}')
    e('v_lshrrev_b32 v10, 7, v0')
    e('v_cvt_f32_u32 v11, v10')
    e('v_mov_b32 v12, 1.0')
    e('v_mov_b32 v13, 0x40400000')
    e('v_fma_f32 v12, v11, v13, v12')
    e('v_mov_b32 v13, 0x41800000')
    e('v_mov_b32 v14, 0x42400000')
    e('v_fma_f32 v13, v11, v14, v13')
    e('v_mul_f32 v14, 0x44000000, v11')
    e(f'v_mul_u32_u24 v15, {48*K0_ROW}, v10')
    e('v_lshlrev_b32 v16, 2, v1')
    e('v_add_u32 v15, v15, v16')
    e('s_waitcnt vmcnt(0)')
    for r in (4, 5, 6, 7, 8, 9):
        e(f'v_lshlrev_b32 v{r}, 16, v{r}')
    exp_acc(e, 17, 8, 18, 19, 24, 25, 26)
    bf16r(e, 17, 17)
    exp_acc(e, 20, 4, 18, 19, 24, 25, 26)
    bf16r(e, 20, 20)
    e('v_mul_f32 v20, v20, v17')
    e('v_mul_f32 v21, v5, v17')
    e('v_mul_f32 v20, s24, v20')
    e('v_sub_f32 v20, 0, v20')
    e('v_mul_f32 v21, 0.15915494, v21')
    e('v_add_f32 v17, v17, v17')
    e('v_mul_f32 v6, v6, v17')
    e('v_mul_f32 v7, v7, v17')
    zpow(e, 22, 23, 20, 21, 12, 18, 19)
    zpow(e, 24, 25, 20, 21, 13, 18, 19)
    zpow(e, 26, 27, 20, 21, 14, 18, 19)
    e('v_mul_f32 v30, v6, v26')
    e('v_mul_f32 v31, v6, v27')
    e('v_fma_f32 v30, -v7, v27, v30')
    e('v_fmac_f32 v31, v7, v26')
    e('v_sub_f32 v28, 0, v23')
    e('v_sub_f32 v29, 0, v25')
    e('v_mov_b32 v32, 1.0')
    e('v_mov_b32 v33, 0')
    def step(cur, nxt, c, d, nd):
        e(f'v_mul_f32 v{nxt}, v{cur}, v{c}')
        e(f'v_mul_f32 v{nxt+1}, v{cur}, v{d}')
        e(f'v_fmac_f32 v{nxt}, v{cur+1}, v{nd}')
        e(f'v_fmac_f32 v{nxt+1}, v{cur+1}, v{c}')
    Lc, Ln, Hc, Hn = 32, 34, 30, 36
    for i in range(32):
        e(f'v_cvt_pk_bf16_f32 v{40+(i&3)}, v{Hc}, v{Hc+1}')
        if i < 31: step(Hc, Hn, 24, 25, 29)
        e(f'ds_write_b32 v15, v{40+(i&3)} offset:{(16+i)*K0_ROW}')
        Hc, Hn = Hn, Hc
        if i % 2 == 0:
            k = i // 2
            e(f'v_cvt_pk_bf16_f32 v{44+(k&3)}, v{Lc}, v{Lc+1}')
            if k < 15: step(Lc, Ln, 22, 28, 23)
            e(f'ds_write_b32 v15, v{44+(k&3)} offset:{k*K0_ROW}')
            Lc, Ln = Ln, Lc
    e('v_lshrrev_b32 v50, 6, v0')
    e('v_and_b32 v51, 15, v0')
    e('v_bfe_u32 v52, v0, 4, 2')
    e('v_lshrrev_b32 v53, 1, v50')
    e(f'v_mul_u32_u24 v53, {48*K0_ROW}, v53')
    e(f'v_mul_u32_u24 v54, {K0_ROW}, v51')
    e('v_add_u32 v53, v53, v54')
    e('v_lshlrev_b32 v54, 4, v52')
    e('v_add_u32 v53, v53, v54')
    e('v_and_b32 v54, 1, v50')
    e(f'v_mul_u32_u24 v54, {16*K0_ROW}, v54')
    e('v_add_u32 v54, v53, v54')
    e('s_waitcnt lgkmcnt(0)')
    e('s_barrier')
    for s in range(8):
        e(f'ds_read_b128 v[{64+4*s}:{67+4*s}], v54 offset:{16*K0_ROW + 64*s}')
        e(f'ds_read_b128 v[{96+4*s}:{99+4*s}], v53 offset:{64*s}')
    e('v_lshlrev_b32 v55, 3, v0')
    e('v_sub_u32 v55, 2047, v55')
    e('s_movk_i32 s27, 0x600')
    for m in range(8):
        r = 128 + m
        e(f'v_subrev_u32 v{r}, {m}, v55')
        e(f'v_cvt_f32_u32 v{r}, v{r}')
        e(f'v_cvt_pk_bf16_f32 v{r}, v{r}, v{r}')
        e(f'v_lshlrev_b32 v{r}, 16, v{r}')
        e(f'v_cvt_u32_f32 v{r}, v{r}')
        e(f'v_and_b32 v56, -4, v{r}')
        e(f'v_add_u32 v56, s27, v56')
        e(f'v_lshlrev_b32 v{r}, 2, v{r}')
        e(f'v_min_u32 v{r}, v{r}, v56')
    for s in range(8):
        e(f's_waitcnt lgkmcnt({14-2*s})')
        c = '0' if s == 0 else 'v[60:63]'
        e(f'v_mfma_f32_16x16x32_bf16 v[60:63], v[{64+4*s}:{67+4*s}], v[{96+4*s}:{99+4*s}], {c}')
    e('v_lshlrev_b32 v57, 10, v50')
    e('v_lshlrev_b32 v58, 8, v52')
    e('v_add_u32 v57, v57, v58')
    e('v_lshlrev_b32 v58, 2, v51')
    e('v_add_u32 v57, v57, v58')
    e('s_barrier')
    e('s_nop 4')
    for j in range(4):
        e(f'ds_write_b32 v57, v{60+j} offset:{64*j}')
    e('s_waitcnt lgkmcnt(0)')
    e('s_barrier')
    for m in range(8):
        e(f'ds_read_b32 v{136+m}, v{128+m}')
    e('v_cmp_eq_u32 vcc, 255, v0')
    e(f's_mul_i32 s21, s18, {KG_ROW}')
    e(f's_add_u32 s21, s21, {KG_OFF}')
    e('v_cndmask_b32 v9, 0, v9, vcc')
    e('s_add_u32 s22, s16, s21')
    e('s_addc_u32 s23, s17, 0')
    e('v_lshlrev_b32 v59, 4, v0')
    e('s_waitcnt lgkmcnt(0)')
    e('v_add_f32 v143, v143, v9')
    for i in range(4):
        e(f'v_cvt_pk_bf16_f32 v{144+i}, v{136+2*i}, v{137+2*i}')
    e('global_store_dwordx4 v59, v[144:147], s[22:23]')
    e('v_cmp_eq_u32 vcc, 0, v0')
    e('v_mov_b32 v148, 0\nv_mov_b32 v149, 0\nv_mov_b32 v150, 0\nv_mov_b32 v151, 0')
    e('v_mov_b32 v59, 4096')
    e('s_and_saveexec_b64 s[28:29], vcc')
    e('s_cbranch_execz K0_END')
    e('global_store_dwordx4 v59, v[148:151], s[22:23]')
    e('s_branch K0_END')
    e.label('K0_LN')
    e(f's_load_dwordx2 s[4:5], s[0:1], {ARG["x"]}')
    e('v_lshrrev_b32 v1, 3, v0')
    e('v_and_b32 v2, 7, v0')
    e('s_mul_i32 s6, s2, 32*1152')
    e('v_mul_u32_u24 v3, 1152, v1')
    e('v_lshlrev_b32 v4, 4, v2')
    e('v_add_u32 v3, v3, v4')
    e('v_add_u32 v3, s6, v3')
    e('s_waitcnt lgkmcnt(0)')
    for i in range(9):
        e(f'global_load_dwordx4 v[{8+4*i}:{11+4*i}], v3, s[4:5] offset:{128*i}')
    e('s_mul_i32 s7, s2, 36864')
    e('v_lshrrev_b32 v5, 2, v2')
    e('v_lshlrev_b32 v5, 10, v5')
    e('v_and_b32 v6, 3, v2')
    e('v_lshlrev_b32 v6, 8, v6')
    e('v_add_u32 v5, v5, v6')
    e('v_and_b32 v6, 15, v1')
    e('v_lshlrev_b32 v6, 4, v6')
    e('v_add_u32 v5, v5, v6')
    e('v_lshrrev_b32 v6, 4, v1')
    e('v_mul_u32_u24 v6, 18432, v6')
    e('v_add_u32 v5, v5, v6')
    e('v_mul_u32_u24 v6, 1216, v1')
    e('v_add_u32 v6, v6, v4')
    e('s_add_u32 s8, s16, s7')
    e('s_addc_u32 s9, s17, 0')
    add64(e, 10, 8, XT_OFF)
    e('s_waitcnt vmcnt(0)')
    X = 48
    for k in range(36):
        e(f'v_lshlrev_b32 v{X+2*k}, 16, v{8+k}')
        e(f'v_and_b32 v{X+2*k+1}, 0xffff0000, v{8+k}')
    e(f'v_add_f32 v120, v{X}, v{X+1}')
    e(f'v_add_f32 v121, v{X+2}, v{X+3}')
    for k in range(4, 72, 2):
        e(f'v_add_f32 v120, v120, v{X+k}')
        e(f'v_add_f32 v121, v121, v{X+k+1}')
    e('v_add_f32 v120, v120, v121')
    def red8(r):
        for ctl in ('quad_perm:[1,0,3,2]', 'quad_perm:[2,3,0,1]', 'row_half_mirror'):
            e('s_nop 1')
            e(f'v_add_f32_dpp v{r}, v{r}, v{r} {ctl} row_mask:0xf bank_mask:0xf')
    red8(120)
    e('v_mul_f32 v120, 0x3ae38e39, v120')
    e(f'v_sub_f32 v122, v{X}, v120')
    e(f'v_sub_f32 v123, v{X+1}, v120')
    e('v_mul_f32 v124, v122, v122')
    e('v_mul_f32 v125, v123, v123')
    for k in range(2, 72, 2):
        e(f'v_sub_f32 v122, v{X+k}, v120')
        e(f'v_sub_f32 v123, v{X+k+1}, v120')
        e('v_fmac_f32 v124, v122, v122')
        e('v_fmac_f32 v125, v123, v123')
    e('v_add_f32 v124, v124, v125')
    red8(124)
    e('v_mul_f32 v124, 0x3ae38e39, v124')
    bf16r(e, 120, 120)
    bf16r(e, 124, 124)
    e('v_add_f32 v124, 0x3727c5ac, v124')
    bf16r(e, 124, 124)
    e('v_sqrt_f32 v124, v124')
    e('s_nop 0')
    bf16r(e, 124, 124)
    e('v_rcp_f32 v124, v124')
    for k in range(36):
        a, b = X+2*k, X+2*k+1
        e(f'v_sub_f32 v{a}, v{a}, v120')
        e(f'v_sub_f32 v{b}, v{b}, v120')
        e(f'v_cvt_pk_bf16_f32 v{8+k}, v{a}, v{b}')
        e(f'v_lshlrev_b32 v{a}, 16, v{8+k}')
        e(f'v_and_b32 v{b}, 0xffff0000, v{8+k}')
        e(f'v_mul_f32 v{a}, v{a}, v124')
        e(f'v_mul_f32 v{b}, v{b}, v124')
        e(f'v_cvt_pk_bf16_f32 v{8+k}, v{a}, v{b}')
        if k % 4 == 3:
            i = k // 4
            e(f'v_add_u32 v7, {2048*i}, v5')
            e(f'ds_write_b128 v6, v[{8+4*i}:{11+4*i}] offset:{128*i}')
            e(f'global_store_dwordx4 v7, v[{8+4*i}:{11+4*i}], s[8:9]')
    e('v_lshrrev_b32 v120, 6, v0')
    e('v_and_b32 v121, 63, v0')
    e('v_and_b32 v122, 1, v120')
    e('v_lshrrev_b32 v123, 5, v121')
    e('v_lshl_add_u32 v122, v122, 1, v123')
    e('v_lshlrev_b32 v123, 3, v122')
    e('v_bfe_u32 v124, v121, 2, 2')
    e('v_add_u32 v123, v123, v124')
    e('v_mul_u32_u24 v123, 1216, v123')
    e('v_bfe_u32 v124, v121, 4, 1')
    e('v_lshlrev_b32 v124, 5, v124')
    e('v_add_u32 v123, v123, v124')
    e('v_and_b32 v124, 3, v121')
    e('v_lshlrev_b32 v124, 3, v124')
    e('v_add_u32 v123, v123, v124')
    e('v_lshrrev_b32 v124, 1, v120')
    e('v_lshlrev_b32 v125, 6, v124')
    e('v_add_u32 v123, v123, v125')
    e('v_and_b32 v125, 31, v121')
    e('v_lshlrev_b32 v125, 6, v125')
    e('v_lshl_add_u32 v125, v122, 4, v125')
    e('v_lshl_add_u32 v125, v124, 11, v125')
    e('s_waitcnt lgkmcnt(0)')
    e('s_barrier')
    for i in range(9):
        e(f'ds_read_b64_tr_b16 v[{48+4*i}:{49+4*i}], v123 offset:{128*i}')
        e(f'ds_read_b64_tr_b16 v[{50+4*i}:{51+4*i}], v123 offset:{128*i + 4*1216}')
    for i in range(9):
        e(f'v_add_u32 v126, {4096*i}, v125')
        e(f's_waitcnt lgkmcnt({min(16-2*i, 15)})')
        e(f'global_store_dwordx4 v126, v[{48+4*i}:{51+4*i}], s[10:11]')
    e.label('K0_END')
    e('s_endpgm')
    return name, 152, 152

LAUNCH = (640, 256, K0_LDS)
```

```python
import sys, importlib
from common import *
import k0
KERNELS = []

HEADER = open('parallel_sum__ssm_conv_s4d__swiglu_ffn__prompt.s.ref').read().split('; Override launch geometry')[0]

def build(which=('k0','k1','k2','k3'), check=True):
    e_all = []
    descs = []
    launches = []
    errs = []
    for kname in which:
        mod = importlib.import_module(kname)
        e = Em()
        name, vgpr, accum = getattr(mod, 'gen_' + kname)(e)
        grid, block, lds = mod.LAUNCH
        if check and not __import__('os').environ.get('NOCHECK'):
            for tn, tr in (getattr(e, 'traces', None) or [(kname, e.trace)]):
                errs += check_hazards(tr, tn) + check_counters(tr, tn) + check_addresses(tr, tn) + check_pointers(tr, tn) + check_soffset(tr, tn)
        e_all.append(e.text())
        descs.append(kernel_desc(name, vgpr, accum))
        launches.append((name, grid, block, lds, vgpr))
    s = HEADER
    for name, grid, block, lds, vgpr in launches:
        if len(launches) == 1: s += f'; @launch grid=({grid},1,1) block=({block},1,1) lds={lds}\n'
        else: s += f'; @launch kernel={name} grid=({grid},1,1) block=({block},1,1) lds={lds}\n'
    s += '.amdgcn_target "amdgcn-amd-amdhsa--gfx950"\n.text\n'
    s += '\n'.join(e_all)
    s += '.section .rodata,"a"\n'
    for d in descs:
        s += '.p2align 6\n' + d + '\n'
    return s, launches, errs

if __name__ == '__main__':
    which = sys.argv[2].split(',') if len(sys.argv) > 2 else ('k0','k1','k2','k3')
    s, launches, errs = build(which)
    for x in errs: print(x)
    print(len(errs), 'verifier errors;', len(s), 'bytes')
    out = sys.argv[1] if len(sys.argv) > 1 else 'out.s'
    open(out, 'w').write(s)
```

```python
import re

REG_RE = re.compile(r'^(-|\|)?(v|a|s)(\d+)\|?$')
RNG_RE = re.compile(r'^(-)?(v|a|s)\[(\d+):(\d+)\]$')

def parse_regs(op):
    op = op.strip()
    m = REG_RE.match(op)
    if m: return [(m.group(2), int(m.group(3)))]
    m = RNG_RE.match(op)
    if m: return [(m.group(2), i) for i in range(int(m.group(3)), int(m.group(4)) + 1)]
    if op == 'vcc': return [('s', 'vcc')]
    if op == 'exec': return [('s', 'exec')]
    if op == 'm0': return [('s', 'm0')]
    return []

def split_ops(rest):
    parts = []; depth = 0; cur = ''
    for ch in rest:
        if ch == '[': depth += 1
        if ch == ']': depth -= 1
        if ch == ',' and depth == 0:
            parts.append(cur.strip()); cur = ''
        else:
            cur += ch
    if cur.strip(): parts.append(cur.strip())
    ops = []; mods = []
    for i, p in enumerate(parts):
        if i == len(parts) - 1:
            w = p.split()
            ops.append(w[0]); mods = w[1:]
        else:
            w = p.split()
            ops.append(w[0])
            if len(w) > 1: mods += w[1:]
    return ops, mods

TRANS = ('v_exp_f32', 'v_log_f32', 'v_rcp_f32', 'v_rsq_f32', 'v_sqrt_f32', 'v_sin_f32', 'v_cos_f32')

class Ins:
    __slots__ = ('text', 'mn', 'kind', 'defs', 'uses', 'meta', 'ops', 'mods', 'sdefs_valu', 'passes', 'A', 'B', 'C', 'storedata')
    def __init__(self, text, meta=None):
        self.text = text; self.meta = meta or {}
        t = text.split(';')[0].strip()
        self.defs = []; self.uses = []; self.sdefs_valu = []; self.passes = 0
        self.A = self.B = self.C = []; self.storedata = []
        if not t or t.endswith(':') or t.startswith('.'):
            self.mn = ''; self.kind = 'none'; self.ops = []; self.mods = []; return
        sp = t.split(None, 1)
        mn = sp[0]; self.mn = mn
        rest = sp[1] if len(sp) > 1 else ''
        ops, mods = split_ops(rest) if rest else ([], [])
        self.ops = ops; self.mods = mods
        R = [parse_regs(o) for o in ops]
        flat = lambda l: [x for y in l for x in y]
        if mn.startswith('v_mfma'):
            self.kind = 'mfma'; self.defs = R[0]; self.A = R[1]; self.B = R[2]; self.C = R[3]
            self.uses = R[1] + R[2] + R[3]
            self.passes = 8 if '32x32' in mn else 4
        elif mn.startswith('v_cmp'):
            self.kind = 'valu'; self.defs = R[0]; self.uses = flat(R[1:]); self.sdefs_valu = R[0]
            if mn.startswith('v_cmpx'): self.defs = self.defs + [('s', 'exec')]
        elif mn in ('v_readfirstlane_b32', 'v_readlane_b32'):
            self.kind = 'valu'; self.defs = R[0]; self.uses = flat(R[1:]); self.sdefs_valu = R[0]
        elif mn.startswith('v_'):
            self.kind = 'valu'
            base = mn.replace('_e32', '').replace('_e64', '')
            if base in ('v_add_co_u32', 'v_sub_co_u32'):
                self.defs = R[0] + R[1]; self.uses = flat(R[2:]); self.sdefs_valu = R[1]
            elif base in ('v_addc_co_u32', 'v_subb_co_u32'):
                self.defs = R[0] + R[1]; self.uses = flat(R[2:]); self.sdefs_valu = R[1]
            elif base.startswith('v_permlane') and 'swap' in base:
                self.defs = R[0] + R[1]; self.uses = R[0] + R[1]
            else:
                self.defs = R[0]; self.uses = flat(R[1:])
                if base in ('v_fmac_f32', 'v_writelane_b32') or base.startswith('v_dot2c'): self.uses = self.uses + R[0]
                if 'dpp' in ' '.join(mods) or any(m.startswith(('quad_perm', 'row_', 'wave_')) for m in mods): self.meta['dpp'] = True
                if base == 'v_cndmask_b32' and len(ops) == 3: self.uses = self.uses + [('s', 'vcc')]
        elif mn.startswith('ds_read') or mn.startswith('ds_bpermute') or mn.startswith('ds_swizzle'):
            self.kind = 'ds'; self.defs = R[0]; self.uses = flat(R[1:])
        elif mn.startswith('ds_write'):
            self.kind = 'ds'; self.uses = flat(R)
        elif mn.startswith('buffer_load'):
            self.kind = 'vmem'
            if 'lds' in mods:
                self.uses = flat(R) + [('s', 'm0')]; self.meta['dma'] = True
            else:
                self.defs = R[0]; self.uses = flat(R[1:])
        elif mn.startswith('buffer_store'):
            self.kind = 'vmem'; self.uses = flat(R); self.storedata = R[0] if 'x4' in mn or 'x3' in mn else []
        elif mn.startswith('global_load_lds'):
            self.kind = 'vmem'; self.uses = flat(R) + [('s', 'm0')]; self.meta['dma'] = True
        elif mn.startswith('global_load'):
            self.kind = 'vmem'; self.defs = R[0]; self.uses = flat(R[1:])
        elif mn.startswith('global_store'):
            self.kind = 'vmem'; self.uses = flat(R); self.storedata = R[1] if 'x4' in mn or 'x3' in mn else []
        elif mn.startswith(('global_atomic', 'buffer_atomic')):
            self.kind = 'vmem'; self.uses = flat(R)
            if 'sc0' in mods: self.defs = R[0]
        elif mn.startswith('s_load') or mn in ('s_memtime', 's_memrealtime'):
            self.kind = 'smem'; self.defs = R[0]; self.uses = flat(R[1:])
        elif mn == 's_waitcnt':
            self.kind = 'wait'
        elif mn == 's_nop':
            self.kind = 'nop'
        elif mn == 's_barrier':
            self.kind = 'barrier'
        elif mn.startswith('s_cmp') or mn.startswith('s_cbranch') or mn in ('s_branch', 's_endpgm', 's_setprio', 's_sleep', 's_setpc_b64'):
            self.kind = 'salu'; self.uses = flat(R)
        elif mn.startswith('s_'):
            self.kind = 'salu'; self.defs = R[0] if R else []; self.uses = flat(R[1:])
            if 'saveexec' in mn: self.defs = self.defs + [('s', 'exec')]
            if mn in ('s_addk_i32', 's_mulk_i32'): self.uses = self.uses + R[0]
        else:
            raise ValueError('unknown instruction: ' + text)

    def states(self):
        if self.kind == 'none': return 0
        if self.kind == 'nop': return int(self.ops[0], 0) + 1
        return 1

def waitvals(ins):
    t = ins.text.split(';')[0]
    vm = re.search(r'vmcnt\((\d+)\)', t); lg = re.search(r'lgkmcnt\((\d+)\)', t)
    return (int(vm.group(1)) if vm else None, int(lg.group(1)) if lg else None)

def check_hazards(trace, name=''):
    errs = []
    n = len(trace)
    W = 24
    for i, c in enumerate(trace):
        if c.kind in ('none', 'nop', 'wait', 'barrier'): continue
        dist = 0
        j = i - 1
        cu = set(c.uses); cd = set(c.defs)
        while j >= 0 and dist < W:
            p = trace[j]
            if p.kind == 'none': j -= 1; continue
            need = 0; why = ''
            pd = set(p.defs)
            if p.kind == 'valu':
                if c.kind == 'mfma' and pd & cu: need, why = 2, 'VALU->MFMA src'
                if c.kind == 'valu' and c.meta.get('dpp') and pd & cu & {r for r in pd if r[0] == 'v'}: need, why = 2, 'VALU->DPP'
                if c.mn.startswith(('v_readfirstlane', 'v_readlane')) and pd & cu: need, why = max(need, 1), 'VALU->readlane'
                if c.mn.startswith('v_permlane') and pd & cu: need, why = 2, 'VALU->permlane'
                sd = set(p.sdefs_valu)
                if sd:
                    if c.kind == 'vmem' and sd & cu: need, why = 5, 'VALU sgpr->VMEM'
                    if c.kind == 'valu' and sd & cu: need, why = max(need, 2), 'VALU sgpr->VALU const'
                    if c.kind == 'salu' and sd & cu: need, why = max(need, 1), 'VALU sgpr->SALU (pad)'
                if p.mn.replace('_e32', '').replace('_e64', '') in TRANS and c.kind in ('valu', 'mfma') and pd & cu:
                    if not (c.mn.replace('_e32', '').replace('_e64', '') in TRANS): need, why = max(need, 1), 'trans->VALU'
                if ('s', 'exec') in pd and c.kind == 'mfma': need, why = 4, 'VALU exec->MFMA'
            if p.kind == 'salu' and ('s', 'm0') in pd and c.meta.get('dma'): need, why = 1, 'M0->DMA'
            if p.kind == 'mfma':
                lat = {4: 8, 8: 12}[p.passes]
                if c.kind == 'mfma':
                    if pd & set(c.A + c.B): need, why = lat, 'MFMA D->MFMA A/B'
                    elif pd & set(c.C):
                        if set(c.C) == pd and c.passes == p.passes: need = 0
                        else: need, why = {4: 6, 8: 10}[p.passes], 'MFMA D->MFMA C overlap'
                    elif pd & cd:
                        need, why = {4: 6, 8: 10}[p.passes], 'MFMA D->MFMA D WAW (conservative)'
                elif c.kind in ('valu', 'vmem', 'ds'):
                    if pd & cu or pd & cd: need, why = lat, 'MFMA D->VALU/mem'
                if c.kind == 'valu' and set(p.C) & cd: need, why = max(need, {4: 3, 8: 7}[p.passes]), (why or 'MFMA C WAR')
            if p.storedata and c.kind == 'valu' and set(p.storedata) & cd: need, why = max(need, 2), 'store data WAR'
            if p.storedata and c.kind in ('ds', 'vmem') and set(p.storedata) & cd: need, why = max(need, 1), 'store data WAR'
            if need > dist:
                errs.append(f'{name}[{i}] {why}: need {need} have {dist}\n    P: {p.text}\n    C: {c.text}')
            dist += p.states()
            j -= 1
    return errs

def check_counters(trace, name=''):
    errs = []
    vm = []
    lg = []
    pend = {}
    sm = []
    slot_fill = {}
    slot_reads = {}
    slot_lastread_bar = {}
    for i, c in enumerate(trace):
        if c.kind == 'none': continue
        if c.meta.get('cond'): continue
        if c.kind == 'wait':
            v, l = waitvals(c)
            if v is not None:
                while len(vm) > v:
                    k = vm.pop(0)
                    for r in trace[k].defs:
                        if pend.get(r) == k: del pend[r]
                    s = trace[k].meta.get('dma_slot')
                    if s is not None:
                        for ss in (s if isinstance(s, list) else [s]):
                            if slot_fill.get(ss, {}).get('idx') == k: slot_fill[ss]['done'] = True
            if l is not None:
                if l == 0:
                    for k in sm:
                        for r in trace[k].defs:
                            if pend.get(r) == k: del pend[r]
                    sm.clear()
                if True:
                    while len(lg) > l:
                        k = lg.pop(0)
                        for r in trace[k].defs:
                            if pend.get(r) == k: del pend[r]
                        s = trace[k].meta.get('wr_slot')
                        if s is not None:
                            for ss in (s if isinstance(s, list) else [s]):
                                if slot_fill.get(ss, {}).get('idx') == k: slot_fill[ss]['done'] = True
            continue
        if c.kind == 'barrier':
            for s, st in slot_fill.items():
                if st['done']: st['bar'] = True
            for s in list(slot_reads.keys()):
                outstanding = [k for k in slot_reads[s] if k in lg]
                slot_reads[s] = outstanding
                if not outstanding: slot_lastread_bar[s] = True
            continue
        for r in c.uses + c.defs:
            if r in pend and not (r in c.defs and r not in c.uses and c.kind in ('vmem', 'ds') and trace[pend[r]].kind == c.kind and False):
                errs.append(f'{name}[{i}] reg {r} has pending load\n    P: {trace[pend[r]].text}\n    C: {c.text}')
                del pend[r]
        rs = c.meta.get('rd_slot')
        if rs is not None:
            for s in (rs if isinstance(rs, list) else [rs]):
                st = slot_fill.get(s)
                shared = c.meta.get('shared', True)
                if st is None: errs.append(f'{name}[{i}] read of never filled slot {s}: {c.text}')
                elif not st['done'] or (shared and not st['bar']): errs.append(f'{name}[{i}] read of slot {s} not yet complete/visible: {c.text}')
                slot_reads.setdefault(s, []).append(i); slot_lastread_bar[s] = False
        for key in ('dma_slot', 'wr_slot'):
            ds = c.meta.get(key)
            if ds is not None:
                for s in (ds if isinstance(ds, list) else [ds]):
                    phys = c.meta.get('phys', {}).get(s) if isinstance(c.meta.get('phys'), dict) else None
                    slot_fill[s] = dict(idx=i, done=False, bar=False)
                fr = c.meta.get('frees')
                if fr is not None:
                    shared = c.meta.get('shared', True)
                    for s in (fr if isinstance(fr, list) else [fr]):
                        if s in slot_reads:
                            outstanding = [k for k in slot_reads[s] if k in lg]
                            if outstanding: errs.append(f'{name}[{i}] overwrite of slot {s} with reads outstanding: {c.text}')
                            elif shared and not slot_lastread_bar.get(s, True): errs.append(f'{name}[{i}] overwrite of slot {s} without barrier after last read: {c.text}')
        if c.kind == 'vmem':
            vm.append(i)
            if len(vm) > 63: errs.append(f'{name}[{i}] more than 63 vmem ops outstanding')
            for r in c.defs: pend[r] = i
        elif c.kind == 'ds':
            lg.append(i)
            for r in c.defs: pend[r] = i
        elif c.kind == 'smem':
            sm.append(i)
            for r in c.defs: pend[r] = i
    return errs

class Em:
    def __init__(self):
        self.lines = []; self.trace = []; self.text_on = True; self.trace_on = True; self.cond = False
    def __call__(self, text, **meta):
        for t in text.split('\n'):
            t = t.strip()
            if not t: continue
            if self.text_on: self.lines.append(t)
            if self.trace_on:
                m = dict(meta)
                if self.cond: m['cond'] = True
                self.trace.append(Ins(t, m))
    def label(self, l):
        if self.text_on: self.lines.append(l + ':')
    def raw(self, t):
        if self.text_on: self.lines.append(t)
    def nop(self, n):
        while n > 0:
            k = min(n, 16); self(f's_nop {k-1}'); n -= k
    def outstanding(self, kind):
        out = []
        for i, c in enumerate(self.trace):
            if c.meta.get('cond'): continue
            if c.kind == 'wait':
                v, l = waitvals(c)
                n = v if kind == 'vm' else l
                if n is not None:
                    while len(out) > n: out.pop(0)
            elif kind == 'vm' and c.kind == 'vmem': out.append(i)
            elif kind == 'lg' and c.kind == 'ds': out.append(i)
        return out
    def mark(self):
        return len(self.trace) - 1
    def wait_for(self, idx, kind):
        out = self.outstanding(kind)
        if idx not in out: return
        n = len(out) - 1 - out.index(idx)
        if kind == 'vm':
            self(f's_waitcnt vmcnt({min(n,63)})')
        else:
            self(f's_waitcnt lgkmcnt({min(n,15)})')
    def text(self):
        return '\n'.join(self.lines) + '\n'
```

```python
from asmlib import *

import os
FUSED = os.environ.get('FUSED', '1') == '1'
XF_OFF = 0x0
XT_OFF = 0x240000
KG_OFF = 0x480000
KG_ROW = 8448 if FUSED else 4224
YT_OFF = 0x940000
PART_OFF = 0xC00000
H_OFF = 0x1500000
FL_OFF = 0x2700000
WS_END = 0x2710000

ARG = dict(x=0, lar=8, aim=16, cre=24, cim=32, ldt=40, dsk=48, bx=56, wg=64, wu=72, wd=80, out=88, dbg=96, ws=104)

def kernel_header(name):
    return f'.globl {name}\n.p2align 8\n.type {name},@function\n{name}:'

def kernel_desc(name, vgpr, accum, sgpr=102):
    return f'''.amdhsa_kernel {name}
  .amdhsa_next_free_vgpr {vgpr}
  .amdhsa_next_free_sgpr {sgpr}
  .amdhsa_accum_offset {accum}
  .amdhsa_group_segment_fixed_size 0
  .amdhsa_kernarg_size 112
  .amdhsa_user_sgpr_count 2
  .amdhsa_user_sgpr_kernarg_segment_ptr 1
  .amdhsa_system_sgpr_workgroup_id_x 1
  .amdhsa_float_denorm_mode_32 3
.end_amdhsa_kernel'''

def add64(e, dst, src, off):
    e(f's_add_u32 s{dst}, s{src}, {off}')
    e(f's_addc_u32 s{dst+1}, s{src+1}, 0')

def srd(e, d, base, nbytes):
    e(f's_mov_b32 s{d}, s{base}')
    e(f's_mov_b32 s{d+1}, s{base+1}')
    e(f's_mov_b32 s{d+2}, {nbytes}')
    e(f's_mov_b32 s{d+3}, 0x00020000')

import os
RT = os.environ.get('RT') == '1'
def rt_begin(e):
    if RT: e('s_memrealtime s[90:91]')
def rt_end(e):
    if RT:
        e('s_waitcnt vmcnt(0) lgkmcnt(0)')
        e('s_memrealtime s[92:93]')
        e(f's_load_dwordx2 s[94:95], s[0:1], {ARG["dbg"]}')
        e('s_waitcnt lgkmcnt(0)')
        e('s_lshl_b32 s91, s2, 3')
        e('v_mov_b32 v1, s91')
        e('v_mov_b32 v2, s90')
        e('v_mov_b32 v3, s92')
        e('s_mov_b64 exec, 1')
        e('global_store_dwordx2 v1, v[2:3], s[94:95]')

PF = os.environ.get('PF', '1') == '1'
_pf = [0]
def code_prefetch(e, start, end, vtmp, vdst, nbytes_est, stmp=84):
    if not PF: return
    _pf[0] += 1
    lab = f'PF_{_pf[0]}'
    e(f's_getpc_b64 s[{stmp}:{stmp+1}]')
    e.label(lab)
    e(f's_sub_u32 s{stmp}, s{stmp}, {lab}-{start}')
    e(f's_subb_u32 s{stmp+1}, s{stmp+1}, 0')
    e(f'v_lshlrev_b32 v{vtmp}, 7, v0')
    n = -(-nbytes_est // 32768)
    for k in range(n):
        if k: e(f'v_add_u32 v{vtmp}, 0x8000, v{vtmp}')
        e(f'v_min_u32 v{vtmp+1}, {end}-{start}-4, v{vtmp}')
        e(f'global_load_dword v{vdst+k}, v{vtmp+1}, s[{stmp}:{stmp+1}]')
```

```python
from common import *

LOG2E = '0x3fb8aa3b'
LOG2E_LO = '0x32a57060'
LN2 = '0x3f317218'
K0_ROW = 544
K0_LDS = 96 * K0_ROW

def bf16r(e, dst, src):
    e(f'v_cvt_pk_bf16_f32 v{dst}, v{src}, v{src}')
    e(f'v_lshlrev_b32 v{dst}, 16, v{dst}')

def exp_acc(e, dst, x, t0, t1, sL, sLlo, sLn2):
    e(f'v_mul_f32 v{t0}, s{sL}, v{x}')
    e(f'v_fma_f32 v{t1}, s{sL}, v{x}, -v{t0}')
    e(f'v_fmac_f32 v{t1}, s{sLlo}, v{x}')
    e(f'v_exp_f32 v{dst}, v{t0}')
    e(f'v_mul_f32 v{t1}, s{sLn2}, v{t1}')
    e(f'v_fmac_f32 v{dst}, v{dst}, v{t1}')

def zpow(e, re, im, a2, b2, p, t0, t1):
    e(f'v_mul_f32 v{t0}, v{a2}, v{p}')
    e(f'v_mul_f32 v{t1}, v{b2}, v{p}')
    e(f'v_exp_f32 v{t0}, v{t0}')
    e(f'v_fract_f32 v{t1}, v{t1}')
    e(f'v_cos_f32 v{re}, v{t1}')
    e(f'v_sin_f32 v{im}, v{t1}')
    e('s_nop 0')
    e(f'v_mul_f32 v{re}, v{re}, v{t0}')
    e(f'v_mul_f32 v{im}, v{im}, v{t0}')

def gen_k0(e):
    name = 'ln_kgen_kernel'
    e.raw(kernel_header(name))
    e('s_cmp_ge_u32 s2, 640')
    e('s_cbranch_scc1 K0_END_X')
    rt_begin(e)
    e(f's_load_dwordx2 s[16:17], s[0:1], {ARG["ws"]}')
    e('s_cmp_lt_u32 s2, 64')
    e('s_cbranch_scc1 K0_LN')
    e(f's_load_dwordx8 s[4:11], s[0:1], {ARG["lar"]}')
    e(f's_load_dwordx4 s[12:15], s[0:1], {ARG["ldt"]}')
    e('s_sub_u32 s18, s2, 64')
    e('v_and_b32 v1, 127, v0')
    e('s_lshl_b32 s19, s18, 8')
    e('v_lshlrev_b32 v2, 1, v1')
    e('v_add_u32 v2, s19, v2')
    e('s_lshl_b32 s20, s18, 1')
    e('v_mov_b32 v3, s20')
    e('s_waitcnt lgkmcnt(0)')
    e('global_load_ushort v4, v2, s[4:5]')
    e('global_load_ushort v5, v2, s[6:7]')
    e('global_load_ushort v6, v2, s[8:9]')
    e('global_load_ushort v7, v2, s[10:11]')
    e('global_load_ushort v8, v3, s[12:13]')
    e('global_load_ushort v9, v3, s[14:15]')
    e(f's_mov_b32 s24, {LOG2E}')
    e(f's_mov_b32 s25, {LOG2E_LO}')
    e(f's_mov_b32 s26, {LN2}')
    e('v_lshrrev_b32 v10, 7, v0')
    e('v_cvt_f32_u32 v11, v10')
    e('v_mov_b32 v12, 1.0')
    e('v_mov_b32 v13, 0x40400000')
    e('v_fma_f32 v12, v11, v13, v12')
    e('v_mov_b32 v13, 0x41800000')
    e('v_mov_b32 v14, 0x42400000')
    e('v_fma_f32 v13, v11, v14, v13')
    e('v_mul_f32 v14, 0x44000000, v11')
    e(f'v_mul_u32_u24 v15, {48*K0_ROW}, v10')
    e('v_lshlrev_b32 v16, 2, v1')
    e('v_add_u32 v15, v15, v16')
    e('s_waitcnt vmcnt(0)')
    for r in (4, 5, 6, 7, 8, 9):
        e(f'v_lshlrev_b32 v{r}, 16, v{r}')
    exp_acc(e, 17, 8, 18, 19, 24, 25, 26)
    bf16r(e, 17, 17)
    exp_acc(e, 20, 4, 18, 19, 24, 25, 26)
    bf16r(e, 20, 20)
    e('v_mul_f32 v20, v20, v17')
    e('v_mul_f32 v21, v5, v17')
    e('v_mul_f32 v20, s24, v20')
    e('v_sub_f32 v20, 0, v20')
    e('v_mul_f32 v21, 0.15915494, v21')
    e('v_add_f32 v17, v17, v17')
    e('v_mul_f32 v6, v6, v17')
    e('v_mul_f32 v7, v7, v17')
    zpow(e, 22, 23, 20, 21, 12, 18, 19)
    zpow(e, 24, 25, 20, 21, 13, 18, 19)
    zpow(e, 26, 27, 20, 21, 14, 18, 19)
    e('v_mul_f32 v30, v6, v26')
    e('v_mul_f32 v31, v6, v27')
    e('v_fma_f32 v30, -v7, v27, v30')
    e('v_fmac_f32 v31, v7, v26')
    e('v_sub_f32 v28, 0, v23')
    e('v_sub_f32 v29, 0, v25')
    e('v_mov_b32 v32, 1.0')
    e('v_mov_b32 v33, 0')
    def step(cur, nxt, c, d, nd):
        e(f'v_mul_f32 v{nxt}, v{cur}, v{c}')
        e(f'v_mul_f32 v{nxt+1}, v{cur}, v{d}')
        e(f'v_fmac_f32 v{nxt}, v{cur+1}, v{nd}')
        e(f'v_fmac_f32 v{nxt+1}, v{cur+1}, v{c}')
    Lc, Ln, Hc, Hn = 32, 34, 30, 36
    for i in range(32):
        e(f'v_cvt_pk_bf16_f32 v{40+(i&3)}, v{Hc}, v{Hc+1}')
        if i < 31: step(Hc, Hn, 24, 25, 29)
        e(f'ds_write_b32 v15, v{40+(i&3)} offset:{(16+i)*K0_ROW}')
        Hc, Hn = Hn, Hc
        if i % 2 == 0:
            k = i // 2
            e(f'v_cvt_pk_bf16_f32 v{44+(k&3)}, v{Lc}, v{Lc+1}')
            if k < 15: step(Lc, Ln, 22, 28, 23)
            e(f'ds_write_b32 v15, v{44+(k&3)} offset:{k*K0_ROW}')
            Lc, Ln = Ln, Lc
    e('v_lshrrev_b32 v50, 6, v0')
    e('v_and_b32 v51, 15, v0')
    e('v_bfe_u32 v52, v0, 4, 2')
    e('v_lshrrev_b32 v53, 1, v50')
    e(f'v_mul_u32_u24 v53, {48*K0_ROW}, v53')
    e(f'v_mul_u32_u24 v54, {K0_ROW}, v51')
    e('v_add_u32 v53, v53, v54')
    e('v_lshlrev_b32 v54, 4, v52')
    e('v_add_u32 v53, v53, v54')
    e('v_and_b32 v54, 1, v50')
    e(f'v_mul_u32_u24 v54, {16*K0_ROW}, v54')
    e('v_add_u32 v54, v53, v54')
    e('s_waitcnt lgkmcnt(0)')
    e('s_barrier')
    for s in range(8):
        e(f'ds_read_b128 v[{64+4*s}:{67+4*s}], v54 offset:{16*K0_ROW + 64*s}')
        e(f'ds_read_b128 v[{96+4*s}:{99+4*s}], v53 offset:{64*s}')
    e('v_lshlrev_b32 v55, 3, v0')
    e('v_sub_u32 v55, 2047, v55')
    e('s_movk_i32 s27, 0x600')
    for m in range(8):
        r = 128 + m
        e(f'v_subrev_u32 v{r}, {m}, v55')
        e(f'v_cvt_f32_u32 v{r}, v{r}')
        e(f'v_cvt_pk_bf16_f32 v{r}, v{r}, v{r}')
        e(f'v_lshlrev_b32 v{r}, 16, v{r}')
        e(f'v_cvt_u32_f32 v{r}, v{r}')
        e(f'v_and_b32 v56, -4, v{r}')
        e(f'v_add_u32 v56, s27, v56')
        e(f'v_lshlrev_b32 v{r}, 2, v{r}')
        e(f'v_min_u32 v{r}, v{r}, v56')
    for s in range(8):
        e(f's_waitcnt lgkmcnt({14-2*s})')
        c = '0' if s == 0 else 'v[60:63]'
        e(f'v_mfma_f32_16x16x32_bf16 v[60:63], v[{64+4*s}:{67+4*s}], v[{96+4*s}:{99+4*s}], {c}')
    e('v_lshlrev_b32 v57, 10, v50')
    e('v_lshlrev_b32 v58, 8, v52')
    e('v_add_u32 v57, v57, v58')
    e('v_lshlrev_b32 v58, 2, v51')
    e('v_add_u32 v57, v57, v58')
    e('s_barrier')
    e('s_nop 4')
    for j in range(4):
        e(f'ds_write_b32 v57, v{60+j} offset:{64*j}')
    e('s_waitcnt lgkmcnt(0)')
    e('s_barrier')
    for m in range(8):
        e(f'ds_read_b32 v{136+m}, v{128+m}')
    e('v_cmp_eq_u32 vcc, 255, v0')
    e(f's_mul_i32 s21, s18, {KG_ROW}')
    e(f's_add_u32 s21, s21, {KG_OFF}')
    e('v_cndmask_b32 v9, 0, v9, vcc')
    e('s_add_u32 s22, s16, s21')
    e('s_addc_u32 s23, s17, 0')
    e('v_lshlrev_b32 v59, 4, v0')
    e('s_waitcnt lgkmcnt(0)')
    e('v_add_f32 v143, v143, v9')
    for i in range(4):
        e(f'v_cvt_pk_bf16_f32 v{144+i}, v{136+2*i}, v{137+2*i}')
    e('global_store_dwordx4 v59, v[144:147], s[22:23]')
    e('v_cmp_eq_u32 vcc, 0, v0')
    e('v_mov_b32 v148, 0\nv_mov_b32 v149, 0\nv_mov_b32 v150, 0\nv_mov_b32 v151, 0')
    e('v_mov_b32 v59, 4096')
    e('s_and_saveexec_b64 s[28:29], vcc')
    e('s_cbranch_execz K0_END')
    e('global_store_dwordx4 v59, v[148:151], s[22:23]')
    e('s_branch K0_END')
    e.label('K0_LN')
    e(f's_load_dwordx2 s[4:5], s[0:1], {ARG["x"]}')
    e('v_lshrrev_b32 v1, 3, v0')
    e('v_and_b32 v2, 7, v0')
    e('s_mul_i32 s6, s2, 32*1152')
    e('v_mul_u32_u24 v3, 1152, v1')
    e('v_lshlrev_b32 v4, 4, v2')
    e('v_add_u32 v3, v3, v4')
    e('v_add_u32 v3, s6, v3')
    e('s_waitcnt lgkmcnt(0)')
    for i in range(9):
        e(f'global_load_dwordx4 v[{8+4*i}:{11+4*i}], v3, s[4:5] offset:{128*i}')
    e('s_mul_i32 s7, s2, 36864')
    e('v_lshrrev_b32 v5, 2, v2')
    e('v_lshlrev_b32 v5, 10, v5')
    e('v_and_b32 v6, 3, v2')
    e('v_lshlrev_b32 v6, 8, v6')
    e('v_add_u32 v5, v5, v6')
    e('v_and_b32 v6, 15, v1')
    e('v_lshlrev_b32 v6, 4, v6')
    e('v_add_u32 v5, v5, v6')
    e('v_lshrrev_b32 v6, 4, v1')
    e('v_mul_u32_u24 v6, 18432, v6')
    e('v_add_u32 v5, v5, v6')
    e('v_mul_u32_u24 v6, 1216, v1')
    e('v_add_u32 v6, v6, v4')
    e('s_add_u32 s8, s16, s7')
    e('s_addc_u32 s9, s17, 0')
    add64(e, 10, 8, XT_OFF)
    e('s_waitcnt vmcnt(0)')
    X = 48
    for k in range(36):
        e(f'v_lshlrev_b32 v{X+2*k}, 16, v{8+k}')
        e(f'v_and_b32 v{X+2*k+1}, 0xffff0000, v{8+k}')
    e(f'v_add_f32 v120, v{X}, v{X+1}')
    e(f'v_add_f32 v121, v{X+2}, v{X+3}')
    for k in range(4, 72, 2):
        e(f'v_add_f32 v120, v120, v{X+k}')
        e(f'v_add_f32 v121, v121, v{X+k+1}')
    e('v_add_f32 v120, v120, v121')
    def red8(r):
        for ctl in ('quad_perm:[1,0,3,2]', 'quad_perm:[2,3,0,1]', 'row_half_mirror'):
            e('s_nop 1')
            e(f'v_add_f32_dpp v{r}, v{r}, v{r} {ctl} row_mask:0xf bank_mask:0xf')
    red8(120)
    e('v_mul_f32 v120, 0x3ae38e39, v120')
    e(f'v_sub_f32 v122, v{X}, v120')
    e(f'v_sub_f32 v123, v{X+1}, v120')
    e('v_mul_f32 v124, v122, v122')
    e('v_mul_f32 v125, v123, v123')
    for k in range(2, 72, 2):
        e(f'v_sub_f32 v122, v{X+k}, v120')
        e(f'v_sub_f32 v123, v{X+k+1}, v120')
        e('v_fmac_f32 v124, v122, v122')
        e('v_fmac_f32 v125, v123, v123')
    e('v_add_f32 v124, v124, v125')
    red8(124)
    e('v_mul_f32 v124, 0x3ae38e39, v124')
    bf16r(e, 120, 120)
    bf16r(e, 124, 124)
    e('v_add_f32 v124, 0x3727c5ac, v124')
    bf16r(e, 124, 124)
    e('v_sqrt_f32 v124, v124')
    e('s_nop 0')
    bf16r(e, 124, 124)
    e('v_rcp_f32 v124, v124')
    for k in range(36):
        a, b = X+2*k, X+2*k+1
        e(f'v_sub_f32 v{a}, v{a}, v120')
        e(f'v_sub_f32 v{b}, v{b}, v120')
        e(f'v_cvt_pk_bf16_f32 v{8+k}, v{a}, v{b}')
        e(f'v_lshlrev_b32 v{a}, 16, v{8+k}')
        e(f'v_and_b32 v{b}, 0xffff0000, v{8+k}')
        e(f'v_mul_f32 v{a}, v{a}, v124')
        e(f'v_mul_f32 v{b}, v{b}, v124')
        e(f'v_cvt_pk_bf16_f32 v{8+k}, v{a}, v{b}')
        if k % 4 == 3:
            i = k // 4
            e(f'v_add_u32 v7, {2048*i}, v5')
            e(f'ds_write_b128 v6, v[{8+4*i}:{11+4*i}] offset:{128*i}')
            e(f'global_store_dwordx4 v7, v[{8+4*i}:{11+4*i}], s[8:9]')
    e('v_lshrrev_b32 v120, 6, v0')
    e('v_and_b32 v121, 63, v0')
    e('v_and_b32 v122, 1, v120')
    e('v_lshrrev_b32 v123, 5, v121')
    e('v_lshl_add_u32 v122, v122, 1, v123')
    e('v_lshlrev_b32 v123, 3, v122')
    e('v_bfe_u32 v124, v121, 2, 2')
    e('v_add_u32 v123, v123, v124')
    e('v_mul_u32_u24 v123, 1216, v123')
    e('v_bfe_u32 v124, v121, 4, 1')
    e('v_lshlrev_b32 v124, 5, v124')
    e('v_add_u32 v123, v123, v124')
    e('v_and_b32 v124, 3, v121')
    e('v_lshlrev_b32 v124, 3, v124')
    e('v_add_u32 v123, v123, v124')
    e('v_lshrrev_b32 v124, 1, v120')
    e('v_lshlrev_b32 v125, 6, v124')
    e('v_add_u32 v123, v123, v125')
    e('v_and_b32 v125, 31, v121')
    e('v_lshlrev_b32 v125, 6, v125')
    e('v_lshl_add_u32 v125, v122, 4, v125')
    e('v_lshl_add_u32 v125, v124, 11, v125')
    e('s_waitcnt lgkmcnt(0)')
    e('s_barrier')
    for i in range(9):
        e(f'ds_read_b64_tr_b16 v[{48+4*i}:{49+4*i}], v123 offset:{128*i}')
        e(f'ds_read_b64_tr_b16 v[{50+4*i}:{51+4*i}], v123 offset:{128*i + 4*1216}')
    for i in range(9):
        e(f'v_add_u32 v126, {4096*i}, v125')
        e(f's_waitcnt lgkmcnt({min(16-2*i, 15)})')
        e(f'global_store_dwordx4 v126, v[{48+4*i}:{51+4*i}], s[10:11]')
    e.label('K0_END')
    rt_end(e)
    e.label('K0_END_X')
    e('s_endpgm')
    return name, 152, 152

LAUNCH = (640, 256, K0_LDS)
```

```python
import re

REG_RE = re.compile(r'^(-|\|)?(v|a|s)(\d+)\|?$')
RNG_RE = re.compile(r'^(-)?(v|a|s)\[(\d+):(\d+)\]$')

def parse_regs(op):
    op = op.strip()
    m = REG_RE.match(op)
    if m: return [(m.group(2), int(m.group(3)))]
    m = RNG_RE.match(op)
    if m: return [(m.group(2), i) for i in range(int(m.group(3)), int(m.group(4)) + 1)]
    if op == 'vcc': return [('s', 'vcc')]
    if op == 'exec': return [('s', 'exec')]
    if op == 'm0': return [('s', 'm0')]
    return []

def split_ops(rest):
    parts = []; depth = 0; cur = ''
    for ch in rest:
        if ch == '[': depth += 1
        if ch == ']': depth -= 1
        if ch == ',' and depth == 0:
            parts.append(cur.strip()); cur = ''
        else:
            cur += ch
    if cur.strip(): parts.append(cur.strip())
    ops = []; mods = []
    for i, p in enumerate(parts):
        if i == len(parts) - 1:
            w = p.split()
            ops.append(w[0]); mods = w[1:]
        else:
            w = p.split()
            ops.append(w[0])
            if len(w) > 1: mods += w[1:]
    return ops, mods

TRANS = ('v_exp_f32', 'v_log_f32', 'v_rcp_f32', 'v_rsq_f32', 'v_sqrt_f32', 'v_sin_f32', 'v_cos_f32')

class Ins:
    __slots__ = ('text', 'mn', 'kind', 'defs', 'uses', 'meta', 'ops', 'mods', 'sdefs_valu', 'passes', 'A', 'B', 'C', 'storedata')
    def __init__(self, text, meta=None):
        self.text = text; self.meta = meta or {}
        t = text.split(';')[0].strip()
        self.defs = []; self.uses = []; self.sdefs_valu = []; self.passes = 0
        self.A = self.B = self.C = []; self.storedata = []
        if not t or t.endswith(':') or t.startswith('.'):
            self.mn = ''; self.kind = 'none'; self.ops = []; self.mods = []; return
        sp = t.split(None, 1)
        mn = sp[0]; self.mn = mn
        rest = sp[1] if len(sp) > 1 else ''
        ops, mods = split_ops(rest) if rest else ([], [])
        self.ops = ops; self.mods = mods
        R = [parse_regs(o) for o in ops]
        flat = lambda l: [x for y in l for x in y]
        if mn.startswith('v_mfma'):
            self.kind = 'mfma'; self.defs = R[0]; self.A = R[1]; self.B = R[2]; self.C = R[3]
            self.uses = R[1] + R[2] + R[3]
            self.passes = 8 if '32x32' in mn else 4
        elif mn.startswith('v_cmp'):
            self.kind = 'valu'; self.defs = R[0]; self.uses = flat(R[1:]); self.sdefs_valu = R[0]
            if mn.startswith('v_cmpx'): self.defs = self.defs + [('s', 'exec')]
        elif mn in ('v_readfirstlane_b32', 'v_readlane_b32'):
            self.kind = 'valu'; self.defs = R[0]; self.uses = flat(R[1:]); self.sdefs_valu = R[0]
        elif mn.startswith('v_'):
            self.kind = 'valu'
            base = mn.replace('_e32', '').replace('_e64', '')
            if base in ('v_add_co_u32', 'v_sub_co_u32'):
                self.defs = R[0] + R[1]; self.uses = flat(R[2:]); self.sdefs_valu = R[1]
            elif base in ('v_addc_co_u32', 'v_subb_co_u32'):
                self.defs = R[0] + R[1]; self.uses = flat(R[2:]); self.sdefs_valu = R[1]
            elif base.startswith('v_permlane') and 'swap' in base:
                self.defs = R[0] + R[1]; self.uses = R[0] + R[1]
            else:
                self.defs = R[0]; self.uses = flat(R[1:])
                if base in ('v_fmac_f32', 'v_writelane_b32') or base.startswith('v_dot2c'): self.uses = self.uses + R[0]
                if 'dpp' in ' '.join(mods) or any(m.startswith(('quad_perm', 'row_', 'wave_')) for m in mods): self.meta['dpp'] = True
                if base == 'v_cndmask_b32' and len(ops) == 3: self.uses = self.uses + [('s', 'vcc')]
        elif mn.startswith('ds_read') or mn.startswith('ds_bpermute') or mn.startswith('ds_swizzle'):
            self.kind = 'ds'; self.defs = R[0]; self.uses = flat(R[1:])
        elif mn.startswith('ds_write'):
            self.kind = 'ds'; self.uses = flat(R)
        elif mn.startswith('buffer_load'):
            self.kind = 'vmem'
            if 'lds' in mods:
                self.uses = flat(R) + [('s', 'm0')]; self.meta['dma'] = True
            else:
                self.defs = R[0]; self.uses = flat(R[1:])
        elif mn.startswith('buffer_store'):
            self.kind = 'vmem'; self.uses = flat(R); self.storedata = R[0] if 'x4' in mn or 'x3' in mn else []
        elif mn.startswith('global_load_lds'):
            self.kind = 'vmem'; self.uses = flat(R) + [('s', 'm0')]; self.meta['dma'] = True
        elif mn.startswith('global_load'):
            self.kind = 'vmem'; self.defs = R[0]; self.uses = flat(R[1:])
        elif mn.startswith('global_store'):
            self.kind = 'vmem'; self.uses = flat(R); self.storedata = R[1] if 'x4' in mn or 'x3' in mn else []
        elif mn.startswith(('global_atomic', 'buffer_atomic')):
            self.kind = 'vmem'; self.uses = flat(R)
            if 'sc0' in mods: self.defs = R[0]
        elif mn.startswith('s_load') or mn in ('s_memtime', 's_memrealtime'):
            self.kind = 'smem'; self.defs = R[0]; self.uses = flat(R[1:])
        elif mn == 's_waitcnt':
            self.kind = 'wait'
        elif mn == 's_nop':
            self.kind = 'nop'
        elif mn == 's_barrier':
            self.kind = 'barrier'
        elif mn.startswith('s_cmp') or mn.startswith('s_cbranch') or mn in ('s_branch', 's_endpgm', 's_setprio', 's_sleep', 's_setpc_b64'):
            self.kind = 'salu'; self.uses = flat(R)
        elif mn.startswith('s_'):
            self.kind = 'salu'; self.defs = R[0] if R else []; self.uses = flat(R[1:])
            if 'saveexec' in mn: self.defs = self.defs + [('s', 'exec')]
            if mn in ('s_addk_i32', 's_mulk_i32'): self.uses = self.uses + R[0]
        else:
            raise ValueError('unknown instruction: ' + text)

    def states(self):
        if self.kind == 'none': return 0
        if self.kind == 'nop': return int(self.ops[0], 0) + 1
        return 1

def waitvals(ins):
    t = ins.text.split(';')[0]
    vm = re.search(r'vmcnt\((\d+)\)', t); lg = re.search(r'lgkmcnt\((\d+)\)', t)
    return (int(vm.group(1)) if vm else None, int(lg.group(1)) if lg else None)

def check_hazards(trace, name=''):
    errs = []
    n = len(trace)
    W = 24
    for i, c in enumerate(trace):
        if c.kind in ('none', 'nop', 'wait', 'barrier'): continue
        dist = 0
        j = i - 1
        cu = set(c.uses); cd = set(c.defs)
        while j >= 0 and dist < W:
            p = trace[j]
            if p.kind == 'none': j -= 1; continue
            need = 0; why = ''
            pd = set(p.defs)
            if p.kind == 'valu':
                if c.kind == 'mfma' and pd & cu: need, why = 2, 'VALU->MFMA src'
                if c.kind == 'valu' and c.meta.get('dpp') and pd & cu & {r for r in pd if r[0] == 'v'}: need, why = 2, 'VALU->DPP'
                if c.mn.startswith(('v_readfirstlane', 'v_readlane')) and pd & cu: need, why = max(need, 1), 'VALU->readlane'
                if c.mn.startswith('v_permlane') and pd & cu: need, why = 2, 'VALU->permlane'
                sd = set(p.sdefs_valu)
                if sd:
                    if c.kind == 'vmem' and sd & cu: need, why = 5, 'VALU sgpr->VMEM'
                    if c.kind == 'valu' and sd & cu: need, why = max(need, 2), 'VALU sgpr->VALU const'
                    if c.kind == 'salu' and sd & cu: need, why = max(need, 1), 'VALU sgpr->SALU (pad)'
                if p.mn.replace('_e32', '').replace('_e64', '') in TRANS and c.kind in ('valu', 'mfma') and pd & cu:
                    if not (c.mn.replace('_e32', '').replace('_e64', '') in TRANS): need, why = max(need, 1), 'trans->VALU'
                if ('s', 'exec') in pd and c.kind == 'mfma': need, why = 4, 'VALU exec->MFMA'
            if p.kind == 'salu' and ('s', 'm0') in pd and c.meta.get('dma'): need, why = 1, 'M0->DMA'
            if p.kind == 'mfma':
                lat = {4: 8, 8: 12}[p.passes]
                if c.kind == 'mfma':
                    if pd & set(c.A + c.B): need, why = lat, 'MFMA D->MFMA A/B'
                    elif pd & set(c.C):
                        if set(c.C) == pd and c.passes == p.passes: need = 0
                        else: need, why = {4: 6, 8: 10}[p.passes], 'MFMA D->MFMA C overlap'
                    elif pd & cd:
                        need, why = {4: 6, 8: 10}[p.passes], 'MFMA D->MFMA D WAW (conservative)'
                elif c.kind in ('valu', 'vmem', 'ds'):
                    if pd & cu or pd & cd: need, why = lat, 'MFMA D->VALU/mem'
                if c.kind == 'valu' and set(p.C) & cd: need, why = max(need, {4: 3, 8: 7}[p.passes]), (why or 'MFMA C WAR')
            if p.storedata and c.kind == 'valu' and set(p.storedata) & cd: need, why = max(need, 2), 'store data WAR'
            if p.storedata and c.kind in ('ds', 'vmem') and set(p.storedata) & cd: need, why = max(need, 1), 'store data WAR'
            if need > dist:
                errs.append(f'{name}[{i}] {why}: need {need} have {dist}\n    P: {p.text}\n    C: {c.text}')
            dist += p.states()
            j -= 1
    return errs

def check_counters(trace, name=''):
    errs = []
    vm = []
    lg = []
    pend = {}
    sm = []
    slot_fill = {}
    slot_reads = {}
    slot_lastread_bar = {}
    for i, c in enumerate(trace):
        if c.kind == 'none': continue
        if c.meta.get('cond'): continue
        if c.kind == 'wait':
            v, l = waitvals(c)
            if v is not None:
                while len(vm) > v:
                    k = vm.pop(0)
                    for r in trace[k].defs:
                        if pend.get(r) == k: del pend[r]
                    s = trace[k].meta.get('dma_slot')
                    if s is not None:
                        for ss in (s if isinstance(s, list) else [s]):
                            if slot_fill.get(ss, {}).get('idx') == k: slot_fill[ss]['done'] = True
            if l is not None:
                if l == 0:
                    for k in sm:
                        for r in trace[k].defs:
                            if pend.get(r) == k: del pend[r]
                    sm.clear()
                if True:
                    while len(lg) > l:
                        k = lg.pop(0)
                        for r in trace[k].defs:
                            if pend.get(r) == k: del pend[r]
                        s = trace[k].meta.get('wr_slot')
                        if s is not None:
                            for ss in (s if isinstance(s, list) else [s]):
                                if slot_fill.get(ss, {}).get('idx') == k: slot_fill[ss]['done'] = True
            continue
        if c.kind == 'barrier':
            for s, st in slot_fill.items():
                if st['done']: st['bar'] = True
            for s in list(slot_reads.keys()):
                outstanding = [k for k in slot_reads[s] if k in lg]
                slot_reads[s] = outstanding
                if not outstanding: slot_lastread_bar[s] = True
            continue
        for r in c.uses + c.defs:
            if r in pend and not (r in c.defs and r not in c.uses and c.kind in ('vmem', 'ds') and trace[pend[r]].kind == c.kind and False):
                errs.append(f'{name}[{i}] reg {r} has pending load\n    P: {trace[pend[r]].text}\n    C: {c.text}')
                del pend[r]
        rs = c.meta.get('rd_slot')
        if rs is not None:
            for s in (rs if isinstance(rs, list) else [rs]):
                st = slot_fill.get(s)
                shared = c.meta.get('shared', True)
                if st is None: errs.append(f'{name}[{i}] read of never filled slot {s}: {c.text}')
                elif not st['done'] or (shared and not st['bar']): errs.append(f'{name}[{i}] read of slot {s} not yet complete/visible: {c.text}')
                slot_reads.setdefault(s, []).append(i); slot_lastread_bar[s] = False
        for key in ('dma_slot', 'wr_slot'):
            ds = c.meta.get(key)
            if ds is not None:
                for s in (ds if isinstance(ds, list) else [ds]):
                    phys = c.meta.get('phys', {}).get(s) if isinstance(c.meta.get('phys'), dict) else None
                    slot_fill[s] = dict(idx=i, done=False, bar=False)
                fr = c.meta.get('frees')
                if fr is not None:
                    shared = c.meta.get('shared', True)
                    for s in (fr if isinstance(fr, list) else [fr]):
                        if s in slot_reads:
                            outstanding = [k for k in slot_reads[s] if k in lg]
                            if outstanding: errs.append(f'{name}[{i}] overwrite of slot {s} with reads outstanding: {c.text}')
                            elif shared and not slot_lastread_bar.get(s, True): errs.append(f'{name}[{i}] overwrite of slot {s} without barrier after last read: {c.text}')
        if c.kind == 'vmem':
            vm.append(i)
            if len(vm) > 63: errs.append(f'{name}[{i}] more than 63 vmem ops outstanding')
            for r in c.defs: pend[r] = i
        elif c.kind == 'ds':
            lg.append(i)
            for r in c.defs: pend[r] = i
        elif c.kind == 'smem':
            sm.append(i)
            for r in c.defs: pend[r] = i
    return errs

class Em:
    def __init__(self):
        self.lines = []; self.trace = []; self.text_on = True; self.trace_on = True; self.cond = False
    def __call__(self, text, **meta):
        for t in text.split('\n'):
            t = t.strip()
            if not t: continue
            if self.text_on: self.lines.append(t)
            if self.trace_on:
                m = dict(meta)
                if self.cond: m['cond'] = True
                self.trace.append(Ins(t, m))
    def label(self, l):
        if self.text_on: self.lines.append(l + ':')
    def raw(self, t):
        if self.text_on: self.lines.append(t)
    def nop(self, n):
        while n > 0:
            k = min(n, 16); self(f's_nop {k-1}'); n -= k
    def outstanding(self, kind):
        out = []
        for i, c in enumerate(self.trace):
            if c.meta.get('cond'): continue
            if c.kind == 'wait':
                v, l = waitvals(c)
                n = v if kind == 'vm' else l
                if n is not None:
                    while len(out) > n: out.pop(0)
            elif kind == 'vm' and c.kind == 'vmem': out.append(i)
            elif kind == 'lg' and c.kind == 'ds': out.append(i)
        return out
    def mark(self):
        return len(self.trace) - 1
    def wait_for(self, idx, kind):
        out = self.outstanding(kind)
        if idx not in out: return
        n = len(out) - 1 - out.index(idx)
        if kind == 'vm':
            self(f's_waitcnt vmcnt({min(n,63)})')
        else:
            self(f's_waitcnt lgkmcnt({min(n,15)})')
    def text(self):
        return '\n'.join(self.lines) + '\n'


INT_OPS = ('v_add_u32', 'v_sub_u32', 'v_subrev_u32', 'v_lshlrev_b32', 'v_lshrrev_b32', 'v_and_b32', 'v_or_b32', 'v_xor_b32', 'v_mov_b32',
           'v_mul_u32_u24', 'v_mul_lo_u32', 'v_min_u32', 'v_max_i32', 'v_max_u32', 'v_lshl_add_u32', 'v_lshl_or_b32', 'v_bfe_u32', 'v_cndmask_b32',
           'v_add_lshl_u32', 'v_and_or_b32', 'v_cvt_u32_f32')
def check_addresses(trace, name=''):
    errs = []
    taint = {}
    for i, c in enumerate(trace):
        if c.kind == 'none': continue
        addr = []
        if c.kind == 'vmem':
            R = [parse_regs(o) for o in c.ops]
            if c.mn.startswith('buffer_'):
                addr = R[0] if c.meta.get('dma') else R[1]
            elif c.mn.startswith('global_load'): addr = R[1] if not c.mn.startswith('global_load_lds') else R[0]
            elif c.mn.startswith(('global_store', 'global_atomic')): addr = R[0]
        elif c.kind == 'ds':
            R = [parse_regs(o) for o in c.ops]
            addr = R[1] if c.defs else R[0]
        for r in addr:
            if r[0] == 'v' and taint.get(r):
                errs.append(f'{name}[{i}] address register {r} descends from data: {taint[r]}\n    C: {c.text}')
        base = c.mn.replace('_e32', '').replace('_e64', '')
        for r in c.defs:
            if r[0] not in 'va': continue
            if c.kind == 'valu' and base in INT_OPS:
                t = None
                if base != 'v_cvt_u32_f32':
                    for u in c.uses:
                        if u[0] == 'v' and taint.get(u): t = taint[u]
                taint[r] = t
            else:
                taint[r] = c.text
    return errs


def check_pointers(trace, name=''):
    errs = []
    ptr = {}
    for i, c in enumerate(trace):
        if c.kind == 'none': continue
        need = []
        if c.kind == 'vmem':
            for o in c.ops:
                R = parse_regs(o)
                if R and R[0][0] == 's' and len(R) == 4 and c.mn.startswith('buffer_'): need = R[:2]; w3 = R[3]; w2 = R[2]
                if R and R[0][0] == 's' and len(R) == 2 and c.mn.startswith('global_'): need = R
            for r in need:
                if not ptr.get(r): errs.append(f'{name}[{i}] base register {r} is not a pointer\n    C: {c.text}')
            if c.mn.startswith('buffer_'):
                if ptr.get(w3) != 'w3': errs.append(f'{name}[{i}] SRD word 3 {w3} overwritten\n    C: {c.text}')
                if ptr.get(w2) != 'w2': errs.append(f'{name}[{i}] SRD word 2 {w2} overwritten\n    C: {c.text}')
        for r in c.defs:
            if r[0] != 's': continue
            v = None
            if c.kind == 'smem' and c.mn.startswith('s_load'): v = True
            elif c.mn == 's_getpc_b64': v = True
            elif c.mn == 's_mov_b32':
                src = parse_regs(c.ops[1])
                if src: v = ptr.get(src[0])
                elif c.ops[1] == '0x00020000': v = 'w3'
                elif c.meta.get('w2') or (c.ops[1].isdigit() and int(c.ops[1]) >= 4096): v = 'w2'
            elif c.mn in ('s_add_u32', 's_addc_u32', 's_sub_u32', 's_subb_u32', 's_cselect_b32'):
                if any(ptr.get(u) is True for u in c.uses if u[0] == 's'): v = True
            ptr[r] = v
    return errs
```

```python
from asmlib import *

import os
FUSED = os.environ.get('FUSED', '1') == '1'
XF_OFF = 0x0
XT_OFF = 0x240000
KG_OFF = 0x480000
KG_ROW = 8448 if FUSED else 4224
YT_OFF = 0x940000
PART_OFF = 0xC00000
H_OFF = 0x1500000
FL_OFF = 0x2700000
WS_END = 0x2710000

ARG = dict(x=0, lar=8, aim=16, cre=24, cim=32, ldt=40, dsk=48, bx=56, wg=64, wu=72, wd=80, out=88, dbg=96, ws=104)

def kernel_header(name):
    return f'.globl {name}\n.p2align 8\n.type {name},@function\n{name}:'

def kernel_desc(name, vgpr, accum, sgpr=102):
    return f'''.amdhsa_kernel {name}
  .amdhsa_next_free_vgpr {vgpr}
  .amdhsa_next_free_sgpr {sgpr}
  .amdhsa_accum_offset {accum}
  .amdhsa_group_segment_fixed_size 0
  .amdhsa_kernarg_size 112
  .amdhsa_user_sgpr_count 2
  .amdhsa_user_sgpr_kernarg_segment_ptr 1
  .amdhsa_system_sgpr_workgroup_id_x 1
  .amdhsa_float_denorm_mode_32 3
.end_amdhsa_kernel'''

def add64(e, dst, src, off):
    e(f's_add_u32 s{dst}, s{src}, {off}')
    e(f's_addc_u32 s{dst+1}, s{src+1}, 0')

def srd(e, d, base, nbytes):
    e(f's_mov_b32 s{d}, s{base}')
    e(f's_mov_b32 s{d+1}, s{base+1}')
    e(f's_mov_b32 s{d+2}, {nbytes}')
    e(f's_mov_b32 s{d+3}, 0x00020000')

import os
RT = os.environ.get('RT') == '1'
def rt_begin(e):
    if RT: e('s_memrealtime s[90:91]')
def rt_end(e):
    if RT:
        e('s_waitcnt vmcnt(0) lgkmcnt(0)')
        e('s_memrealtime s[92:93]')
        e(f's_load_dwordx2 s[94:95], s[0:1], {ARG["dbg"]}')
        e('s_waitcnt lgkmcnt(0)')
        e('s_lshl_b32 s91, s2, 3')
        e('v_mov_b32 v1, s91')
        e('v_mov_b32 v2, s90')
        e('v_mov_b32 v3, s92')
        e('s_mov_b64 exec, 1')
        e('global_store_dwordx2 v1, v[2:3], s[94:95]')

PF = os.environ.get('PF', '1') == '1'
_pf = [0]
def code_prefetch(e, start, end, vtmp, vdst, nbytes_est, stmp=84):
    if not PF: return
    _pf[0] += 1
    lab = f'PF_{_pf[0]}'
    e(f's_getpc_b64 s[{stmp}:{stmp+1}]')
    e.label(lab)
    e(f's_sub_u32 s{stmp}, s{stmp}, {lab}-{start}')
    e(f's_subb_u32 s{stmp+1}, s{stmp+1}, 0')
    e(f'v_lshlrev_b32 v{vtmp}, 7, v0')
    n = -(-nbytes_est // 32768)
    for k in range(n):
        if k: e(f'v_add_u32 v{vtmp}, 0x8000, v{vtmp}')
        e(f'v_min_u32 v{vtmp+1}, {end}-{start}-4, v{vtmp}')
        e(f'global_load_dword v{vdst+k}, v{vtmp+1}, s[{stmp}:{stmp+1}]')

def code_prefetch_xcd(e, start, end, vtmp, vdst, sI, stmp=56):
    if not PF: return
    _pf[0] += 1
    lab = f'PF_{_pf[0]}'
    e(f's_getpc_b64 s[{stmp}:{stmp+1}]')
    e.label(lab)
    e(f's_sub_u32 s{stmp}, s{stmp}, {lab}-{start}')
    e(f's_subb_u32 s{stmp+1}, s{stmp+1}, 0')
    e(f'v_and_b32 v{vtmp}, 63, v0')
    e(f'v_min_u32 v{vtmp}, 23, v{vtmp}')
    e(f's_mul_i32 s{stmp+2}, s{sI}, 24')
    e(f'v_add_u32 v{vtmp}, s{stmp+2}, v{vtmp}')
    e(f'v_lshlrev_b32 v{vtmp}, 7, v{vtmp}')
    e(f'v_min_u32 v{vtmp}, {end}-{start}-4, v{vtmp}')
    e(f'global_load_dword v{vdst}, v{vtmp}, s[{stmp}:{stmp+1}]')
```

```python
import re

REG_RE = re.compile(r'^(-|\|)?(v|a|s)(\d+)\|?$')
RNG_RE = re.compile(r'^(-)?(v|a|s)\[(\d+):(\d+)\]$')

def parse_regs(op):
    op = op.strip()
    m = REG_RE.match(op)
    if m: return [(m.group(2), int(m.group(3)))]
    m = RNG_RE.match(op)
    if m: return [(m.group(2), i) for i in range(int(m.group(3)), int(m.group(4)) + 1)]
    if op == 'vcc': return [('s', 'vcc')]
    if op == 'exec': return [('s', 'exec')]
    if op == 'm0': return [('s', 'm0')]
    return []

def split_ops(rest):
    parts = []; depth = 0; cur = ''
    for ch in rest:
        if ch == '[': depth += 1
        if ch == ']': depth -= 1
        if ch == ',' and depth == 0:
            parts.append(cur.strip()); cur = ''
        else:
            cur += ch
    if cur.strip(): parts.append(cur.strip())
    ops = []; mods = []
    for i, p in enumerate(parts):
        if i == len(parts) - 1:
            w = p.split()
            ops.append(w[0]); mods = w[1:]
        else:
            w = p.split()
            ops.append(w[0])
            if len(w) > 1: mods += w[1:]
    return ops, mods

TRANS = ('v_exp_f32', 'v_log_f32', 'v_rcp_f32', 'v_rsq_f32', 'v_sqrt_f32', 'v_sin_f32', 'v_cos_f32')

class Ins:
    __slots__ = ('text', 'mn', 'kind', 'defs', 'uses', 'meta', 'ops', 'mods', 'sdefs_valu', 'passes', 'A', 'B', 'C', 'storedata')
    def __init__(self, text, meta=None):
        self.text = text; self.meta = meta or {}
        t = text.split(';')[0].strip()
        self.defs = []; self.uses = []; self.sdefs_valu = []; self.passes = 0
        self.A = self.B = self.C = []; self.storedata = []
        if not t or t.endswith(':') or t.startswith('.'):
            self.mn = ''; self.kind = 'none'; self.ops = []; self.mods = []; return
        sp = t.split(None, 1)
        mn = sp[0]; self.mn = mn
        rest = sp[1] if len(sp) > 1 else ''
        ops, mods = split_ops(rest) if rest else ([], [])
        self.ops = ops; self.mods = mods
        R = [parse_regs(o) for o in ops]
        flat = lambda l: [x for y in l for x in y]
        if mn.startswith('v_mfma'):
            self.kind = 'mfma'; self.defs = R[0]; self.A = R[1]; self.B = R[2]; self.C = R[3]
            self.uses = R[1] + R[2] + R[3]
            self.passes = 8 if '32x32' in mn else 4
        elif mn.startswith('v_cmp'):
            self.kind = 'valu'; self.defs = R[0]; self.uses = flat(R[1:]); self.sdefs_valu = R[0]
            if mn.startswith('v_cmpx'): self.defs = self.defs + [('s', 'exec')]
        elif mn in ('v_readfirstlane_b32', 'v_readlane_b32'):
            self.kind = 'valu'; self.defs = R[0]; self.uses = flat(R[1:]); self.sdefs_valu = R[0]
        elif mn.startswith('v_'):
            self.kind = 'valu'
            base = mn.replace('_e32', '').replace('_e64', '')
            if base in ('v_add_co_u32', 'v_sub_co_u32'):
                self.defs = R[0] + R[1]; self.uses = flat(R[2:]); self.sdefs_valu = R[1]
            elif base in ('v_addc_co_u32', 'v_subb_co_u32'):
                self.defs = R[0] + R[1]; self.uses = flat(R[2:]); self.sdefs_valu = R[1]
            elif base.startswith('v_permlane') and 'swap' in base:
                self.defs = R[0] + R[1]; self.uses = R[0] + R[1]
            else:
                self.defs = R[0]; self.uses = flat(R[1:])
                if base in ('v_fmac_f32', 'v_writelane_b32') or base.startswith('v_dot2c'): self.uses = self.uses + R[0]
                if 'dpp' in ' '.join(mods) or any(m.startswith(('quad_perm', 'row_', 'wave_')) for m in mods): self.meta['dpp'] = True
                if base == 'v_cndmask_b32' and len(ops) == 3: self.uses = self.uses + [('s', 'vcc')]
        elif mn.startswith('ds_read') or mn.startswith('ds_bpermute') or mn.startswith('ds_swizzle'):
            self.kind = 'ds'; self.defs = R[0]; self.uses = flat(R[1:])
        elif mn.startswith('ds_write'):
            self.kind = 'ds'; self.uses = flat(R)
        elif mn.startswith('buffer_load'):
            self.kind = 'vmem'
            if 'lds' in mods:
                self.uses = flat(R) + [('s', 'm0')]; self.meta['dma'] = True
            else:
                self.defs = R[0]; self.uses = flat(R[1:])
        elif mn.startswith('buffer_store'):
            self.kind = 'vmem'; self.uses = flat(R); self.storedata = R[0] if 'x4' in mn or 'x3' in mn else []
        elif mn.startswith('global_load_lds'):
            self.kind = 'vmem'; self.uses = flat(R) + [('s', 'm0')]; self.meta['dma'] = True
        elif mn.startswith('global_load'):
            self.kind = 'vmem'; self.defs = R[0]; self.uses = flat(R[1:])
        elif mn.startswith('global_store'):
            self.kind = 'vmem'; self.uses = flat(R); self.storedata = R[1] if 'x4' in mn or 'x3' in mn else []
        elif mn.startswith(('global_atomic', 'buffer_atomic')):
            self.kind = 'vmem'; self.uses = flat(R)
            if 'sc0' in mods: self.defs = R[0]
        elif mn.startswith('s_load') or mn in ('s_memtime', 's_memrealtime'):
            self.kind = 'smem'; self.defs = R[0]; self.uses = flat(R[1:])
        elif mn == 's_waitcnt':
            self.kind = 'wait'
        elif mn == 's_nop':
            self.kind = 'nop'
        elif mn == 's_barrier':
            self.kind = 'barrier'
        elif mn.startswith('s_cmp') or mn.startswith('s_cbranch') or mn in ('s_branch', 's_endpgm', 's_setprio', 's_sleep', 's_setpc_b64'):
            self.kind = 'salu'; self.uses = flat(R)
        elif mn.startswith('s_'):
            self.kind = 'salu'; self.defs = R[0] if R else []; self.uses = flat(R[1:])
            if 'saveexec' in mn: self.defs = self.defs + [('s', 'exec')]
            if mn in ('s_addk_i32', 's_mulk_i32'): self.uses = self.uses + R[0]
        else:
            raise ValueError('unknown instruction: ' + text)

    def states(self):
        if self.kind == 'none': return 0
        if self.kind == 'nop': return int(self.ops[0], 0) + 1
        return 1

def waitvals(ins):
    t = ins.text.split(';')[0]
    vm = re.search(r'vmcnt\((\d+)\)', t); lg = re.search(r'lgkmcnt\((\d+)\)', t)
    return (int(vm.group(1)) if vm else None, int(lg.group(1)) if lg else None)

def check_hazards(trace, name=''):
    errs = []
    n = len(trace)
    W = 24
    for i, c in enumerate(trace):
        if c.kind in ('none', 'nop', 'wait', 'barrier'): continue
        dist = 0
        j = i - 1
        cu = set(c.uses); cd = set(c.defs)
        while j >= 0 and dist < W:
            p = trace[j]
            if p.kind == 'none': j -= 1; continue
            need = 0; why = ''
            pd = set(p.defs)
            if p.kind == 'valu':
                if c.kind == 'mfma' and pd & cu: need, why = 2, 'VALU->MFMA src'
                if c.kind == 'valu' and c.meta.get('dpp') and pd & cu & {r for r in pd if r[0] == 'v'}: need, why = 2, 'VALU->DPP'
                if c.mn.startswith(('v_readfirstlane', 'v_readlane')) and pd & cu: need, why = max(need, 1), 'VALU->readlane'
                if c.mn.startswith('v_permlane') and pd & cu: need, why = 2, 'VALU->permlane'
                sd = set(p.sdefs_valu)
                if sd:
                    if c.kind == 'vmem' and sd & cu: need, why = 5, 'VALU sgpr->VMEM'
                    if c.kind == 'valu' and sd & cu: need, why = max(need, 2), 'VALU sgpr->VALU const'
                    if c.kind == 'salu' and sd & cu: need, why = max(need, 1), 'VALU sgpr->SALU (pad)'
                if p.mn.replace('_e32', '').replace('_e64', '') in TRANS and c.kind in ('valu', 'mfma') and pd & cu:
                    if not (c.mn.replace('_e32', '').replace('_e64', '') in TRANS): need, why = max(need, 1), 'trans->VALU'
                if ('s', 'exec') in pd and c.kind == 'mfma': need, why = 4, 'VALU exec->MFMA'
            if p.kind == 'salu' and ('s', 'm0') in pd and c.meta.get('dma'): need, why = 1, 'M0->DMA'
            if p.kind == 'mfma':
                lat = {4: 8, 8: 12}[p.passes]
                if c.kind == 'mfma':
                    if pd & set(c.A + c.B): need, why = lat, 'MFMA D->MFMA A/B'
                    elif pd & set(c.C):
                        if set(c.C) == pd and c.passes == p.passes: need = 0
                        else: need, why = {4: 6, 8: 10}[p.passes], 'MFMA D->MFMA C overlap'
                    elif pd & cd:
                        need, why = {4: 6, 8: 10}[p.passes], 'MFMA D->MFMA D WAW (conservative)'
                elif c.kind in ('valu', 'vmem', 'ds'):
                    if pd & cu or pd & cd: need, why = lat, 'MFMA D->VALU/mem'
                if c.kind == 'valu' and set(p.C) & cd: need, why = max(need, {4: 3, 8: 7}[p.passes]), (why or 'MFMA C WAR')
            if p.storedata and c.kind == 'valu' and set(p.storedata) & cd: need, why = max(need, 2), 'store data WAR'
            if p.storedata and c.kind in ('ds', 'vmem') and set(p.storedata) & cd: need, why = max(need, 1), 'store data WAR'
            if need > dist:
                errs.append(f'{name}[{i}] {why}: need {need} have {dist}\n    P: {p.text}\n    C: {c.text}')
            dist += p.states()
            j -= 1
    return errs

def check_counters(trace, name=''):
    errs = []
    vm = []
    lg = []
    pend = {}
    sm = []
    slot_fill = {}
    slot_reads = {}
    slot_lastread_bar = {}
    for i, c in enumerate(trace):
        if c.kind == 'none': continue
        if c.meta.get('cond'): continue
        if c.kind == 'wait':
            v, l = waitvals(c)
            if v is not None:
                while len(vm) > v:
                    k = vm.pop(0)
                    for r in trace[k].defs:
                        if pend.get(r) == k: del pend[r]
                    s = trace[k].meta.get('dma_slot')
                    if s is not None:
                        for ss in (s if isinstance(s, list) else [s]):
                            if slot_fill.get(ss, {}).get('idx') == k: slot_fill[ss]['done'] = True
            if l is not None:
                if l == 0:
                    for k in sm:
                        for r in trace[k].defs:
                            if pend.get(r) == k: del pend[r]
                    sm.clear()
                if True:
                    while len(lg) > l:
                        k = lg.pop(0)
                        for r in trace[k].defs:
                            if pend.get(r) == k: del pend[r]
                        s = trace[k].meta.get('wr_slot')
                        if s is not None:
                            for ss in (s if isinstance(s, list) else [s]):
                                if slot_fill.get(ss, {}).get('idx') == k: slot_fill[ss]['done'] = True
            continue
        if c.kind == 'barrier':
            for s, st in slot_fill.items():
                if st['done']: st['bar'] = True
            for s in list(slot_reads.keys()):
                outstanding = [k for k in slot_reads[s] if k in lg]
                slot_reads[s] = outstanding
                if not outstanding: slot_lastread_bar[s] = True
            continue
        for r in c.uses + c.defs:
            if r in pend and not (r in c.defs and r not in c.uses and c.kind in ('vmem', 'ds') and trace[pend[r]].kind == c.kind and False):
                errs.append(f'{name}[{i}] reg {r} has pending load\n    P: {trace[pend[r]].text}\n    C: {c.text}')
                del pend[r]
        rs = c.meta.get('rd_slot')
        if rs is not None:
            for s in (rs if isinstance(rs, list) else [rs]):
                st = slot_fill.get(s)
                shared = c.meta.get('shared', True)
                if st is None: errs.append(f'{name}[{i}] read of never filled slot {s}: {c.text}')
                elif not st['done'] or (shared and not st['bar']): errs.append(f'{name}[{i}] read of slot {s} not yet complete/visible: {c.text}')
                slot_reads.setdefault(s, []).append(i); slot_lastread_bar[s] = False
        for key in ('dma_slot', 'wr_slot'):
            ds = c.meta.get(key)
            if ds is not None:
                for s in (ds if isinstance(ds, list) else [ds]):
                    phys = c.meta.get('phys', {}).get(s) if isinstance(c.meta.get('phys'), dict) else None
                    slot_fill[s] = dict(idx=i, done=False, bar=False)
                fr = c.meta.get('frees')
                if fr is not None:
                    shared = c.meta.get('shared', True)
                    for s in (fr if isinstance(fr, list) else [fr]):
                        if s in slot_reads:
                            outstanding = [k for k in slot_reads[s] if k in lg]
                            if outstanding: errs.append(f'{name}[{i}] overwrite of slot {s} with reads outstanding: {c.text}')
                            elif shared and not slot_lastread_bar.get(s, True): errs.append(f'{name}[{i}] overwrite of slot {s} without barrier after last read: {c.text}')
        if c.kind == 'vmem':
            vm.append(i)
            if len(vm) > 63: errs.append(f'{name}[{i}] more than 63 vmem ops outstanding')
            for r in c.defs: pend[r] = i
        elif c.kind == 'ds':
            lg.append(i)
            for r in c.defs: pend[r] = i
        elif c.kind == 'smem':
            sm.append(i)
            for r in c.defs: pend[r] = i
    return errs

class Em:
    def __init__(self):
        self.lines = []; self.trace = []; self.text_on = True; self.trace_on = True; self.cond = False
    def __call__(self, text, **meta):
        for t in text.split('\n'):
            t = t.strip()
            if not t: continue
            if self.text_on: self.lines.append(t)
            if self.trace_on:
                m = dict(meta)
                if self.cond: m['cond'] = True
                self.trace.append(Ins(t, m))
    def label(self, l):
        if self.text_on: self.lines.append(l + ':')
    def raw(self, t):
        if self.text_on: self.lines.append(t)
    def nop(self, n):
        while n > 0:
            k = min(n, 16); self(f's_nop {k-1}'); n -= k
    def outstanding(self, kind):
        out = []
        for i, c in enumerate(self.trace):
            if c.meta.get('cond'): continue
            if c.kind == 'wait':
                v, l = waitvals(c)
                n = v if kind == 'vm' else l
                if n is not None:
                    while len(out) > n: out.pop(0)
            elif kind == 'vm' and c.kind == 'vmem': out.append(i)
            elif kind == 'lg' and c.kind == 'ds': out.append(i)
        return out
    def mark(self):
        return len(self.trace) - 1
    def wait_for(self, idx, kind):
        out = self.outstanding(kind)
        if idx not in out: return
        n = len(out) - 1 - out.index(idx)
        if kind == 'vm':
            self(f's_waitcnt vmcnt({min(n,63)})')
        else:
            self(f's_waitcnt lgkmcnt({min(n,15)})')
    def text(self):
        return '\n'.join(self.lines) + '\n'


INT_OPS = ('v_add_u32', 'v_sub_u32', 'v_subrev_u32', 'v_lshlrev_b32', 'v_lshrrev_b32', 'v_and_b32', 'v_or_b32', 'v_xor_b32', 'v_mov_b32',
           'v_mul_u32_u24', 'v_mul_lo_u32', 'v_min_u32', 'v_max_i32', 'v_max_u32', 'v_lshl_add_u32', 'v_lshl_or_b32', 'v_bfe_u32', 'v_cndmask_b32',
           'v_add_lshl_u32', 'v_and_or_b32', 'v_cvt_u32_f32')
def check_addresses(trace, name=''):
    errs = []
    taint = {}
    for i, c in enumerate(trace):
        if c.kind == 'none': continue
        addr = []
        if c.kind == 'vmem':
            R = [parse_regs(o) for o in c.ops]
            if c.mn.startswith('buffer_'):
                addr = R[0] if c.meta.get('dma') else R[1]
            elif c.mn.startswith('global_load'): addr = R[1] if not c.mn.startswith('global_load_lds') else R[0]
            elif c.mn.startswith(('global_store', 'global_atomic')): addr = R[0]
        elif c.kind == 'ds':
            R = [parse_regs(o) for o in c.ops]
            addr = R[1] if c.defs else R[0]
        for r in addr:
            if r[0] == 'v' and taint.get(r):
                errs.append(f'{name}[{i}] address register {r} descends from data: {taint[r]}\n    C: {c.text}')
        base = c.mn.replace('_e32', '').replace('_e64', '')
        for r in c.defs:
            if r[0] not in 'va': continue
            if c.kind == 'valu' and base in INT_OPS:
                t = None
                if base != 'v_cvt_u32_f32':
                    for u in c.uses:
                        if u[0] == 'v' and taint.get(u): t = taint[u]
                taint[r] = t
            else:
                taint[r] = c.text
    return errs


def check_pointers(trace, name=''):
    errs = []
    ptr = {}
    for i, c in enumerate(trace):
        if c.kind == 'none': continue
        need = []
        if c.kind == 'vmem':
            for o in c.ops:
                R = parse_regs(o)
                if R and R[0][0] == 's' and len(R) == 4 and c.mn.startswith('buffer_'): need = R[:2]; w3 = R[3]; w2 = R[2]
                if R and R[0][0] == 's' and len(R) == 2 and c.mn.startswith('global_'): need = R
            for r in need:
                if not ptr.get(r): errs.append(f'{name}[{i}] base register {r} is not a pointer\n    C: {c.text}')
            if c.mn.startswith('buffer_'):
                if ptr.get(w3) != 'w3': errs.append(f'{name}[{i}] SRD word 3 {w3} overwritten\n    C: {c.text}')
                if ptr.get(w2) != 'w2': errs.append(f'{name}[{i}] SRD word 2 {w2} overwritten\n    C: {c.text}')
        for r in c.defs:
            if r[0] != 's': continue
            v = None
            if c.kind == 'smem' and c.mn.startswith('s_load'): v = True
            elif c.mn == 's_getpc_b64': v = True
            elif c.mn == 's_mov_b32':
                src = parse_regs(c.ops[1])
                if src: v = ptr.get(src[0])
                elif c.ops[1] == '0x00020000': v = 'w3'
                elif c.meta.get('w2') or (c.ops[1].isdigit() and int(c.ops[1]) >= 4096): v = 'w2'
            elif c.mn in ('s_add_u32', 's_addc_u32', 's_sub_u32', 's_subb_u32', 's_cselect_b32'):
                if any(ptr.get(u) is True for u in c.uses if u[0] == 's'): v = True
            ptr[r] = v
    return errs


def check_soffset(trace, name=''):
    errs = []
    unused = {}
    for i, c in enumerate(trace):
        if c.kind == 'none': continue
        for u in c.uses:
            if u in unused: del unused[u]
        if c.kind == 'salu' and c.mn in ('s_add_u32', 's_mov_b32'):
            for d in c.defs:
                if d in unused and c.meta.get('cond') == trace[unused[d]].meta.get('cond'):
                    errs.append(f'{name}[{i}] {d} written again before its value was used\n    P: {trace[unused[d]].text}\n    C: {c.text}')
                if d not in c.uses: unused[d] = i
        elif c.defs:
            for d in c.defs: unused.pop(d, None)
    return errs
```

```python
import sys, importlib
from common import *
import k0
KERNELS = []

HEADER = open('parallel_sum__ssm_conv_s4d__swiglu_ffn__prompt.s.ref').read().split('; Override launch geometry')[0]

DOC = """;
;
"""

def build(which=('k0','k1','k2','k3'), check=True):
    e_all = []
    descs = []
    launches = []
    errs = []
    for kname in which:
        mod = importlib.import_module(kname)
        e = Em()
        name, vgpr, accum = getattr(mod, 'gen_' + kname)(e)
        grid, block, lds = mod.LAUNCH
        if check and not __import__('os').environ.get('NOCHECK'):
            for tn, tr in (getattr(e, 'traces', None) or [(kname, e.trace)]):
                errs += check_hazards(tr, tn) + check_counters(tr, tn) + check_addresses(tr, tn) + check_pointers(tr, tn) + check_soffset(tr, tn)
        e_all.append(e.text())
        descs.append(kernel_desc(name, vgpr, accum))
        launches.append((name, grid, block, lds, vgpr))
    s = HEADER
    for name, grid, block, lds, vgpr in launches:
        if len(launches) == 1: s += f'; @launch grid=({grid},1,1) block=({block},1,1) lds={lds}\n'
        else: s += f'; @launch kernel={name} grid=({grid},1,1) block=({block},1,1) lds={lds}\n'
    s += DOC
    s += '.amdgcn_target "amdgcn-amd-amdhsa--gfx950"\n.text\n'
    s += '\n'.join(e_all)
    s += '.section .rodata,"a"\n'
    for d in descs:
        s += '.p2align 6\n' + d + '\n'
    return s, launches, errs

if __name__ == '__main__':
    which = sys.argv[2].split(',') if len(sys.argv) > 2 else ('k0','k1','k2','k3')
    s, launches, errs = build(which)
    for x in errs: print(x)
    print(len(errs), 'verifier errors;', len(s), 'bytes')
    out = sys.argv[1] if len(sys.argv) > 1 else 'out.s'
    open(out, 'w').write(s)
```
